```python
import torch

def _softmax(x, axis=-1):
    return torch.softmax(x, dim=axis)

def _gelu(x):
    return torch.nn.functional.gelu(x, approximate='tanh')

def _silu(x):
    return torch.nn.functional.silu(x)

def _sigmoid(x):
    return torch.sigmoid(x)

def _layernorm(x, axis=-1, eps=1e-05):
    m = x.mean(dim=axis, keepdim=True)
    v = x.var(dim=axis, keepdim=True, unbiased=False)
    return (x - m) / torch.sqrt(v + eps)

def _scatter_add(tgt, idx, src, axis=0):
    return tgt.clone().index_add_(axis, idx, src)

def _segment_sum(src, seg, n):
    out = torch.zeros((n,) + src.shape[1:], dtype=src.dtype)
    return out.index_add_(0, seg, src)

def _pad(x, pw):
    flat = tuple((v for pair in reversed(pw) for v in pair))
    return torch.nn.functional.pad(x, flat)
kernel_name = 'standalone__autoregressive_conv_wavernn__speech'

def setup_inputs():

    _w = lambda a: (lambda t: t.to(torch.bfloat16) if t.is_floating_point() else t)(torch.as_tensor(a))
    B, T, D, K = (2, 16000, 256, 3)
    return {'x': _w((lambda *s: torch.randn(*s, dtype=torch.bfloat16) * 0.1)(B, T, D)), 'w': _w((lambda *s: torch.randn(*s, dtype=torch.bfloat16) * 0.1)(K, D, 2 * D))}

def reference(x, w):
    B, T, D = x.shape
    K = w.shape[0]
    dil = 2
    pad = (K - 1) * dil
    xp = _pad(x, ((0, 0), (pad, 0), (0, 0)))
    h = torch.einsum('btd,de->bte', xp[:, 0:T, :], w[0])
    for i in range(1, K):
        h = h + torch.einsum('btd,de->bte', xp[:, i * dil:i * dil + T, :], w[i])
    f, g = (h[..., :D].clone(), h[..., D:].clone())
    return torch.tanh(f) * _sigmoid(g)
```

```python
import sys, math

KNAME = "standalone__autoregressive_conv_wavernn__speech_kernel"

class Cfg:
    stamps = False
    store_flags = ""
    xflags = ""
    wflags = ""
    bar_gap = 30
    pf = 3

cfg = Cfg()
for a in sys.argv[2:]:
    k, v = a.split("=", 1)
    old = getattr(cfg, k)
    if isinstance(old, bool): v = v in ("1", "true", "True")
    elif isinstance(old, int): v = int(v)
    setattr(cfg, k, v)

S_X, S_W, S_O = 12, 16, 20
S_WAVE, S_CG, S_BLK, S_B, S_PAR = 24, 25, 26, 27, 28
S_T0, S_T1, S_T2 = 29, 30, 31
S_C1, S_C2, S_CL = 32, 33, 34
S_XSOFF, S_OSOFF, S_WSOFF = 35, 36, 37
S_M0X, S_M0W = 38, 39
S_STAMP = 40
V_XOFF = 1
V_WOFF = 5
V_XA = 9
V_WA0, V_WA1 = 17, 18
V_OOFF = 19
V_XF = 20
V_P, V_Q, V_R, V_E = 36, 52, 68, 84
V_T = 100
V_OUT = 112
V_XH = 116
V_S = 120
NV = 128

def vr(b, n): return f"v[{b}:{b+n-1}]"
def ar(b, n): return f"a[{b}:{b+n-1}]"
def sr(b, n): return f"s[{b}:{b+n-1}]"

class E:
    def __init__(self):
        self.lines = []
        self.vm = []
        self.lg = []
        self.ninstr = 0
        self.nstamp = 0
    def raw(self, s):
        self.lines.append(s)
    def i(self, s):
        self.lines.append("    " + s)
        self.ninstr += 1
    def vmem(self, s, tag):
        self.i(s); self.vm.append(tag)
        assert len(self.vm) <= 63, "vmcnt overflow"
    def lds(self, s, tag):
        self.i(s); self.lg.append(tag)
        assert len(self.lg) <= 15, "lgkmcnt overflow"
    def need_vm(self, tags):
        idx = -1
        for k, t in enumerate(self.vm):
            if t in tags: idx = k
        if idx < 0: return None
        n = len(self.vm) - 1 - idx
        self.vm = self.vm[idx+1:]
        return n
    def need_lg(self, tags):
        idx = -1
        for k, t in enumerate(self.lg):
            if t in tags: idx = k
        if idx < 0: return None
        n = len(self.lg) - 1 - idx
        self.lg = self.lg[idx+1:]
        return n
    def wait(self, vm=None, lg=None):
        n = self.need_vm(vm) if vm else None
        l = self.need_lg(lg) if lg else None
        parts = []
        if n is not None: parts.append(f"vmcnt({n})")
        if l is not None: parts.append(f"lgkmcnt({l})")
        if parts: self.i("s_waitcnt " + " ".join(parts))
    def wait_lg_all(self):
        if self.lg:
            self.lg = []
            self.i("s_waitcnt lgkmcnt(0)")
    def stamp(self, name):
        if not cfg.stamps: return
        k = self.nstamp; self.nstamp += 1
        assert 44 + 2*k + 1 < 100
        self.i(f"s_memtime s[{44+2*k}:{45+2*k}]")
        self.lg.append("stamp")
        self.lg.append("stamp")

e = E()

def xslot(m): return (m + 2) & 3
def wslot(q): return 4 + (q % 6)

def issue_x(m):
    return [
        ("salu", f"s_add_u32 m0, s{S_M0X}, {xslot(m)*16384}"),
        ("salu", f"s_mov_b32 s{S_XSOFF}, {max(m,0)*1024}"),
    ] + [("vmem", f"buffer_load_dwordx4 v{(V_XH if m < 0 else V_XOFF)+k}, {sr(S_X,4)}, s{S_XSOFF} offen offset:{1024*k} {cfg.xflags} lds", f"X{m}") for k in range(4)]

def issue_w(q):
    return [
        ("salu", f"s_add_u32 m0, s{S_M0X}, {wslot(q)*16384}"),
        ("salu", f"s_mov_b32 s{S_WSOFF}, {q*65536}"),
    ] + [("vmem", f"buffer_load_dwordx4 v{V_WOFF+k}, {sr(S_W,4)}, s{S_WSOFF} offen offset:{1024*k} {cfg.wflags} lds", f"W{q}") for k in range(4)]

def emit(item):
    kind = item[0]
    if kind == "vmem": e.vmem(item[1], item[2])
    elif kind == "lds": e.lds(item[1], item[2])
    elif kind == "waitvm": e.wait(vm=item[1])
    elif kind == "waitlg": e.wait(lg=item[1])
    else: e.i(item[1])

def emit_all(items):
    for it in items: emit(it)

def xread(m, c):
    off = xslot(m)*16384 + 256*(c >> 3)
    return ("lds", f"ds_read_b128 {vr(V_XF + 4*(c & 3), 4)}, v{V_XA + (c & 7)} offset:{off}", f"x{m}_{c}")

def wread(q, cc, s):
    slot = wslot(q) - 4
    if slot < 4: base, off = V_WA0, slot*16384
    else: base, off = V_WA1, (slot-4)*16384
    off += 4096*cc + 256*s
    tap, c = q >> 2, (q & 3)*4 + cc
    a = (tap*16 + c)*4 + 2*s
    return ("lds", f"ds_read_b64_tr_b16 {ar(a,2)}, v{base} offset:{off}", f"w{q}")

def mfma(chain, c, first, last):
    tap = {"P": 2, "Q": 1, "R": 0}[chain]
    D = {"P": V_P, "Q": V_Q, "R": V_R}[chain]
    C = vr(D, 16)
    if first: C = {"P": vr(V_Q,16), "Q": vr(V_R,16), "R": "0"}[chain]
    if last and chain == "P": D = V_E
    A = ar((tap*16 + c)*4, 4)
    B = vr(V_XF + 4*(c & 3), 4)
    return ("mfma", f"v_mfma_f32_32x32x16_bf16 {vr(D,16)}, {A}, {B}, {C}")

def epilogue_ops(m):
    ops = []
    t = V_T
    for pr in range(4):
        i0, i1 = 2*pr, 2*pr + 1
        z0, z1, y0, y1, p0, p1 = t, t+1, t+2, t+3, t+4, t+5
        if pr & 1: z0, z1, y0, y1, p0, p1 = [x + 6 for x in (z0, z1, y0, y1, p0, p1)]
        ops += [
            (4, "valu", f"v_mul_f32 v{z0}, s{S_C1}, v{V_E+i0}"),
            (4, "valu", f"v_mul_f32 v{z1}, s{S_C1}, v{V_E+i1}"),
            (4, "valu", f"v_mul_f32 v{y0}, s{S_C2}, v{V_E+8+i0}"),
            (4, "valu", f"v_mul_f32 v{y1}, s{S_C2}, v{V_E+8+i1}"),
            (4, "valu", f"v_min_f32 v{z0}, s{S_CL}, v{z0}"),
            (4, "valu", f"v_min_f32 v{z1}, s{S_CL}, v{z1}"),
            (8, "valu", f"v_exp_f32 v{y0}, v{y0}"),
            (8, "valu", f"v_exp_f32 v{y1}, v{y1}"),
            (8, "valu", f"v_exp_f32 v{z0}, v{z0}"),
            (8, "valu", f"v_exp_f32 v{z1}, v{z1}"),
            (4, "valu", f"v_add_f32 v{p0}, 1.0, v{z0}"),
            (4, "valu", f"v_add_f32 v{p1}, 1.0, v{z1}"),
            (4, "valu", f"v_fmac_f32 v{p0}, v{p0}, v{y0}"),
            (4, "valu", f"v_fmac_f32 v{p1}, v{p1}, v{y1}"),
            (8, "valu", f"v_rcp_f32 v{p0}, v{p0}"),
            (8, "valu", f"v_rcp_f32 v{p1}, v{p1}"),
            (4, "nop", None),
            (4, "valu", f"v_fma_f32 v{z0}, -v{z0}, v{p0}, v{p0}"),
            (4, "valu", f"v_fma_f32 v{z1}, -v{z1}, v{p1}, v{p1}"),
            (4, "valu", f"v_cvt_pk_bf16_f32 v{V_OUT+pr}, v{z0}, v{z1}"),
        ]
    ops = [o for o in ops if o[1] != "nop"]
    ops.append((4, "salu", f"s_mov_b32 s{S_OSOFF}, {m*1024}"))
    ops.append((8, "vmem", f"buffer_store_dwordx4 {vr(V_OUT,4)}, v{V_OOFF}, {sr(S_O,4)}, s{S_OSOFF} offen {cfg.store_flags}", f"S{m}"))
    return ops

COST = {"salu": 4, "vmem": 12, "lds": 4, "waitvm": 4, "waitlg": 4, "bar": 4}

def step(m, chains, epi):
    nch = len(chains)
    ng = 16*nch
    gaps = [[] for _ in range(ng)]
    pre = [[] for _ in range(ng)]
    nxt = m + 1 <= 15
    for c in range(16):
        pre[nch*c].append(("waitlg", [f"x{m}_{c}"]))
        cc = c + cfg.pf
        if cc < 16: gaps[nch*c].append(xread(m, cc))
        elif nxt: gaps[nch*c].append(xread(m+1, cc-16))
    if nxt:
        bg = min(cfg.bar_gap * nch // 3, nch*(16-cfg.pf) - 1)
        gaps[bg].append(("waitvm", [f"X{m+1}"]))
        gaps[bg].append(("bar", "s_barrier"))
        if m + 3 <= 15:
            it = issue_x(m+3)
            gaps[bg+1] += it[:3]
            for k in range(1, 4): gaps[bg+1+k].append(it[2+k])
    if epi is not None:
        ops = epilogue_ops(epi)
        total = sum(o[0] for o in ops)
        g0 = 3 if nch == 3 else 4
        g1 = ng - 4 if nch > 1 else ng - 1
        fixed = [sum(COST[f[0]] for f in gaps[g]) + (sum(COST[f[0]] for f in pre[g+1]) if g+1 < ng else 0) for g in range(ng)]
        L = 0
        while sum(max(0, L - fixed[g]) for g in range(g0, g1)) < total + 8: L += 1
        k = 0; credit = 0
        for g in range(g0, g1):
            credit += max(0, L - fixed[g])
            while k < len(ops) and ops[k][0] <= credit + 2:
                credit -= ops[k][0]
                gaps[g].append(ops[k][1:]); k += 1
        while k < len(ops):
            gaps[g1-1].append(ops[k][1:]); k += 1
    g = 0
    start_instr = e.ninstr
    for c in range(16):
        for ch in chains:
            emit_all(pre[g])
            emit(mfma(ch, c, c == 0, c == 15))
            emit_all(gaps[g])
            g += 1

def gen():
    e.raw(f"; @launch grid=(256,1,1) block=(256,1,1) lds=163840")
    e.raw('.amdgcn_target "amdgcn-amd-amdhsa--gfx950"')
    e.raw(".text")
    e.raw(f".globl {KNAME}")
    e.raw(".p2align 8")
    e.raw(f".type {KNAME},@function")
    e.raw(f"{KNAME}:")
    e.i("s_cmp_ge_u32 s2, 256")
    e.i("s_cbranch_scc1 L_end")
    e.i("s_load_dwordx4 s[4:7], s[0:1], 0")
    e.i("s_load_dwordx4 s[8:11], s[0:1], 16")
    if cfg.stamps:
        e.i("s_load_dwordx2 s[42:43], s[0:1], 32")
        e.i("s_memtime s[100:101]")
    e.i("v_lshrrev_b32 v1, 6, v0")
    e.i("v_and_b32 v0, 63, v0")
    e.i(f"v_readfirstlane_b32 s{S_WAVE}, v1")
    e.i(f"s_and_b32 s{S_T0}, s2, 7")
    e.i(f"s_lshr_b32 s{S_T1}, s2, 3")
    e.i(f"s_and_b32 s{S_CG}, s{S_T1}, 3")
    e.i(f"s_lshr_b32 s{S_T1}, s{S_T1}, 2")
    e.i(f"s_lshl_b32 s{S_T0}, s{S_T0}, 3")
    e.i(f"s_add_u32 s{S_T0}, s{S_T0}, s{S_T1}")
    e.i(f"s_and_b32 s{S_BLK}, s{S_T0}, 15")
    e.i(f"s_lshr_b32 s{S_T1}, s{S_T0}, 4")
    e.i(f"s_and_b32 s{S_PAR}, s{S_T1}, 1")
    e.i(f"s_lshr_b32 s{S_B}, s{S_T1}, 1")
    e.i(f"s_mul_i32 s{S_T0}, s{S_B}, 16000")
    e.i(f"s_lshl_b32 s{S_T1}, s{S_BLK}, 10")
    e.i(f"s_add_u32 s{S_T0}, s{S_T0}, s{S_T1}")
    e.i(f"s_add_u32 s{S_T0}, s{S_T0}, s{S_PAR}")
    e.i(f"s_lshl_b32 s{S_T0}, s{S_T0}, 9")
    e.i(f"s_lshl_b32 s{S_M0X}, s{S_WAVE}, 12")
    e.i(f"s_mov_b32 s{S_C1}, 0x{f2u(-2.0*math.log2(math.e)):08x}")
    e.i(f"s_mov_b32 s{S_C2}, 0x{f2u(-math.log2(math.e)):08x}")
    e.i(f"s_mov_b32 s{S_CL}, 0x{f2u(32.0):08x}")
    s0, s1, s2_, s3 = V_S, V_S+1, V_S+2, V_S+3
    e.i(f"v_lshrrev_b32 v{s0}, 5, v0")
    e.i(f"v_and_b32 v{s1}, 31, v0")
    e.i(f"s_lshl_b32 s{S_T1}, s{S_WAVE}, 3")
    e.i(f"v_add_u32 v{s0}, s{S_T1}, v{s0}")
    e.i(f"s_cmp_eq_u32 s{S_BLK}, 15")
    e.i(f"s_cselect_b32 s{S_T2}, 20, 32")
    for k in range(4):
        e.i(f"v_add_u32 v{s2_}, {2*k}, v{s0}")
        e.i(f"v_and_b32 v{s3}, 15, v{s2_}")
        e.i(f"v_xor_b32 v{s3}, v{s3}, v{s1}")
        e.i(f"v_lshlrev_b32 v{s3}, 4, v{s3}")
        e.i(f"v_lshl_add_u32 v{s3}, v{s2_}, 14, v{s3}")
        e.i(f"v_add_u32 v{s3}, s{S_T0}, v{s3}")
        if k: e.i(f"v_subrev_u32 v{s3}, {1024*k}, v{s3}")
        e.i(f"v_cmp_gt_u32 vcc, s{S_T2}, v{s2_}")
        e.i(f"v_mov_b32 v{V_XOFF+k}, 0x80000000")
        e.i(f"s_nop 0")
        e.i(f"v_cndmask_b32 v{V_XOFF+k}, v{V_XOFF+k}, v{s3}, vcc")
    return

def f2u(x):
    import struct
    return struct.unpack("<I", struct.pack("<f", x))[0]

def gen_rest():
    s0, s1, s2_, s3 = V_S, V_S+1, V_S+2, V_S+3
    for k in range(4):
        e.i(f"v_subrev_u32 v{V_XH+k}, 2048, v{V_XOFF+k}")
    e.i(f"s_or_b32 s{S_T1}, s{S_BLK}, s{S_WAVE}")
    e.i(f"s_cmp_eq_u32 s{S_T1}, 0")
    e.i(f"s_cselect_b32 s{S_T1}, 32, 0")
    e.i(f"v_cmp_gt_u32 vcc, s{S_T1}, v0")
    e.i(f"v_mov_b32 v{s0}, 0x80000000")
    e.i(f"s_nop 0")
    e.i(f"v_cndmask_b32 v{V_XH}, v{V_XH}, v{s0}, vcc")
    e.i(f"v_lshrrev_b32 v{s0}, 4, v0")
    e.i(f"v_lshlrev_b32 v{s0}, 12, v{s0}")
    e.i(f"s_lshl_b32 s{S_T1}, s{S_WAVE}, 14")
    e.i(f"s_lshl_b32 s{S_T2}, s{S_CG}, 7")
    e.i(f"s_add_u32 s{S_T1}, s{S_T1}, s{S_T2}")
    e.i(f"v_add_u32 v{s0}, s{S_T1}, v{s0}")
    e.i(f"v_and_b32 v{s1}, 1, v0")
    e.i(f"v_lshl_add_u32 v{s0}, v{s1}, 4, v{s0}")
    e.i(f"v_bfe_u32 v{s1}, v0, 1, 3")
    for k in range(4):
        e.i(f"v_xor_b32 v{s2_}, {k}, v{s1}")
        e.i(f"v_and_b32 v{s3}, 3, v{s2_}")
        e.i(f"v_lshl_add_u32 v{V_WOFF+k}, v{s3}, 5, v{s0}")
        e.i(f"v_lshrrev_b32 v{s3}, 2, v{s2_}")
        e.i(f"v_lshl_add_u32 v{V_WOFF+k}, v{s3}, 9, v{V_WOFF+k}")

def gen_addr2():
    s0, s1, s2_, s3 = V_S, V_S+1, V_S+2, V_S+3
    e.i(f"v_and_b32 v{s0}, 31, v0")
    e.i(f"v_lshrrev_b32 v{s1}, 5, v0")
    e.i(f"v_and_b32 v{s2_}, 15, v{s0}")
    e.i(f"v_xor_b32 v{s2_}, v{s2_}, v{s1}")
    e.i(f"v_lshlrev_b32 v{s2_}, 4, v{s2_}")
    e.i(f"v_lshl_add_u32 v{V_XA}, v{s0}, 9, v{s2_}")
    for c in range(1, 8):
        e.i(f"v_xor_b32 v{V_XA+c}, {32*c}, v{V_XA}")
    e.i(f"v_lshlrev_b32 v{s2_}, 14, v{s0}")
    e.i(f"v_lshl_add_u32 v{s2_}, v{s1}, 4, v{s2_}")
    e.i(f"s_lshl_b32 s{S_T1}, s{S_CG}, 7")
    e.i(f"s_add_u32 s{S_T1}, s{S_T1}, s{S_T0}")
    e.i(f"s_lshl_b32 s3, s{S_WAVE}, 5")
    e.i(f"s_add_u32 s{S_T1}, s{S_T1}, s3")
    e.i(f"v_add_u32 v{s2_}, s{S_T1}, v{s2_}")
    e.i(f"v_cmp_gt_u32 vcc, s{S_T2+0}, v{s0}") if False else None
    e.i(f"s_cmp_eq_u32 s{S_BLK}, 15")
    e.i(f"s_cselect_b32 s{S_T2}, 20, 32")
    e.i(f"v_cmp_gt_u32 vcc, s{S_T2}, v{s0}")
    e.i(f"v_mov_b32 v{V_OOFF}, 0x80000000")
    e.i(f"s_nop 0")
    e.i(f"v_cndmask_b32 v{V_OOFF}, v{V_OOFF}, v{s2_}, vcc")
    e.i(f"v_bfe_u32 v{s0}, v0, 2, 2")
    e.i(f"v_bfe_u32 v{s1}, v0, 4, 1")
    e.i(f"v_lshlrev_b32 v{s1}, 2, v{s1}")
    e.i(f"v_add_u32 v{s1}, s{S_WAVE}, v{s1}")
    e.i(f"v_xor_b32 v{s1}, v{s1}, v{s0}")
    e.i(f"v_lshlrev_b32 v{s1}, 5, v{s1}")
    e.i(f"v_lshl_add_u32 v{s1}, v{s0}, 10, v{s1}")
    e.i(f"v_lshrrev_b32 v{s0}, 5, v0")
    e.i(f"v_lshl_add_u32 v{s1}, v{s0}, 9, v{s1}")
    e.i(f"v_and_b32 v{s0}, 1, v0")
    e.i(f"v_lshl_add_u32 v{s1}, v{s0}, 4, v{s1}")
    e.i(f"v_and_b32 v{s0}, 2, v0")
    e.i(f"v_lshl_add_u32 v{s1}, v{s0}, 2, v{s1}")
    e.i(f"v_add_u32 v{V_WA0}, 0x10000, v{s1}")
    e.i(f"v_add_u32 v{V_WA1}, 0x20000, v{s1}")

def srds():
    for (S, lo, nbytes) in ((S_X, 4, 16384000), (S_W, 6, 786432), (S_O, 8, 16384000)):
        e.i(f"s_mov_b32 s{S}, s{lo}")
        e.i(f"s_and_b32 s{S+1}, s{lo+1}, 0xffff")
        e.i(f"s_mov_b32 s{S+2}, {nbytes}")
        e.i(f"s_mov_b32 s{S+3}, 0x20000")

def main():
    gen()
    gen_rest()
    e.i("s_waitcnt lgkmcnt(0)")
    srds()
    e.stamp("start-issue")
    it = issue_x(-2); emit_all(it)
    for q in range(4): emit_all(issue_w(q))
    it = issue_x(-1); it[1] = ("salu", f"s_mov_b32 s{S_XSOFF}, 1024"); emit_all(it)
    for q in (4, 5): emit_all(issue_w(q))
    gen_addr2()
    if cfg.stamps: e.wait_lg_all()
    later = {1: [("W", 6)], 2: [("W", 7)], 3: [("X", 0), ("W", 8)], 4: [("W", 9)], 5: [("W", 10)], 6: [("W", 11)],
             7: [("X", 1)], 8: [("X", 2)], 9: [("X", 3)]}
    for q in range(12):
        m = q // 4 - 2
        chains = ["R", "QR", "PQR"][q // 4]
        tags = [f"W{q}"] + ([f"X{m}"] if q % 4 == 0 else [])
        e.wait(vm=tags)
        e.i("s_barrier")
        if q % 4 == 0: e.stamp(f"phase q={q} data arrived")
        for (kind, idx) in later.get(q, []):
            emit_all(issue_x(idx) if kind == "X" else issue_w(idx))
        for cc in range(4):
            for s in range(2): emit(wread(q, cc, s))
        for cc in range(4): emit(xread(m, (q & 3)*4 + cc))
        e.wait_lg_all()
        for cc in range(4):
            c = (q & 3)*4 + cc
            for ch in chains: emit(mfma(ch, c, c == 0, c == 15))
    e.wait(vm=["X1"])
    e.i("s_barrier")
    e.stamp("enter steady")
    if cfg.stamps: e.wait_lg_all()
    for c in range(cfg.pf): emit(xread(1, c))
    for m in range(1, 14):
        step(m, ["P", "Q", "R"], m-1)
    e.stamp("steady done")
    step(14, ["P", "Q"], 13)
    step(15, ["P"], 14)
    e.stamp("mfma done")
    e.i("s_nop 15")
    for o in epilogue_ops(15): emit(o[1:])
    if cfg.stamps:
        e.i("s_waitcnt vmcnt(0) lgkmcnt(0)")
        e.stamp("end")
        e.i("s_waitcnt lgkmcnt(0)")
        e.i(f"s_lshl_b32 s3, s2, 2")
        e.i(f"s_add_u32 s3, s3, s{S_WAVE}")
        e.i(f"s_lshl_b32 s3, s3, 8")
        e.i(f"s_add_u32 s42, s42, s3")
        e.i(f"s_addc_u32 s43, s43, 0")
        e.i(f"v_mov_b32 v0, 0")
        e.i(f"v_mov_b32 v2, s100"); e.i(f"v_mov_b32 v3, s101")
        e.i(f"global_store_dwordx2 v0, v[2:3], s[42:43] offset:0")
        for k in range(e.nstamp):
            e.i(f"v_mov_b32 v2, s{44+2*k}"); e.i(f"v_mov_b32 v3, s{45+2*k}")
            e.i(f"global_store_dwordx2 v0, v[2:3], s[42:43] offset:{8*(k+1)}")
            e.i("s_nop 1")
        e.i("s_getreg_b32 s3, hwreg(HW_REG_XCC_ID)")
        e.i("v_mov_b32 v2, s3")
        e.i("s_getreg_b32 s3, hwreg(HW_REG_HW_ID)")
        e.i("v_mov_b32 v3, s3")
        e.i(f"global_store_dwordx2 v0, v[2:3], s[42:43] offset:248")
    e.raw("L_end:")
    e.i("s_endpgm")
    e.raw('.section .rodata,"a"')
    e.raw(".p2align 6")
    e.raw(f".amdhsa_kernel {KNAME}")
    e.raw(f"  .amdhsa_next_free_vgpr {NV + 192}")
    e.raw("  .amdhsa_next_free_sgpr 102")
    e.raw(f"  .amdhsa_accum_offset {NV}")
    e.raw("  .amdhsa_group_segment_fixed_size 0")
    e.raw("  .amdhsa_kernarg_size 40")
    e.raw("  .amdhsa_user_sgpr_count 2")
    e.raw("  .amdhsa_user_sgpr_kernarg_segment_ptr 1")
    e.raw("  .amdhsa_system_sgpr_workgroup_id_x 1")
    e.raw("  .amdhsa_float_denorm_mode_32 3")
    e.raw(".end_amdhsa_kernel")
    hdr = open("standalone__autoregressive_conv_wavernn__speech.s.ref").read().split("; Override")[0]
    open(sys.argv[1], "w").write(hdr + "\n".join(e.lines) + "\n")

main()
```

```python
import sys, math

KNAME = "standalone__autoregressive_conv_wavernn__speech_kernel"

class Cfg:
    stamps = False
    store_flags = ""
    xflags = ""
    wflags = ""
    bar_gap = 30
    pf = 3
    spin = 0

cfg = Cfg()
for a in sys.argv[2:]:
    k, v = a.split("=", 1)
    old = getattr(cfg, k)
    if isinstance(old, bool): v = v in ("1", "true", "True")
    elif isinstance(old, int): v = int(v)
    setattr(cfg, k, v)

S_X, S_W, S_O = 12, 16, 20
S_WAVE, S_CG, S_BLK, S_B, S_PAR = 24, 25, 26, 27, 28
S_T0, S_T1, S_T2 = 29, 30, 31
S_C1, S_C2, S_CL = 32, 33, 34
S_XSOFF, S_OSOFF, S_WSOFF = 35, 36, 37
S_M0X, S_M0W = 38, 39
S_STAMP = 40
V_XOFF = 1
V_WOFF = 5
V_XA = 9
V_WA0, V_WA1 = 17, 18
V_OOFF = 19
V_XF = 20
V_P, V_Q, V_R, V_E = 36, 52, 68, 84
V_T = 100
V_OUT = 112
V_XH = 116
V_S = 120
NV = 128

def vr(b, n): return f"v[{b}:{b+n-1}]"
def ar(b, n): return f"a[{b}:{b+n-1}]"
def sr(b, n): return f"s[{b}:{b+n-1}]"

class E:
    def __init__(self):
        self.lines = []
        self.vm = []
        self.lg = []
        self.ninstr = 0
        self.nstamp = 0
    def raw(self, s):
        self.lines.append(s)
    def i(self, s):
        self.lines.append("    " + s)
        self.ninstr += 1
    def vmem(self, s, tag):
        self.i(s); self.vm.append(tag)
        assert len(self.vm) <= 63, "vmcnt overflow"
    def lds(self, s, tag):
        self.i(s); self.lg.append(tag)
        assert len(self.lg) <= 15, "lgkmcnt overflow"
    def need_vm(self, tags):
        idx = -1
        for k, t in enumerate(self.vm):
            if t in tags: idx = k
        if idx < 0: return None
        n = len(self.vm) - 1 - idx
        self.vm = self.vm[idx+1:]
        return n
    def need_lg(self, tags):
        idx = -1
        for k, t in enumerate(self.lg):
            if t in tags: idx = k
        if idx < 0: return None
        n = len(self.lg) - 1 - idx
        self.lg = self.lg[idx+1:]
        return n
    def wait(self, vm=None, lg=None):
        n = self.need_vm(vm) if vm else None
        l = self.need_lg(lg) if lg else None
        parts = []
        if n is not None: parts.append(f"vmcnt({n})")
        if l is not None: parts.append(f"lgkmcnt({l})")
        if parts: self.i("s_waitcnt " + " ".join(parts))
    def wait_lg_all(self):
        if self.lg:
            self.lg = []
            self.i("s_waitcnt lgkmcnt(0)")
    def stamp(self, name):
        if not cfg.stamps: return
        k = self.nstamp; self.nstamp += 1
        assert 44 + 2*k + 1 < 100
        self.i(f"s_memtime s[{44+2*k}:{45+2*k}]")
        self.lg.append("stamp")
        self.lg.append("stamp")

e = E()

def xslot(m): return (m + 2) & 3
def wslot(q): return 4 + (q % 6)

def issue_x(m):
    return [
        ("salu", f"s_add_u32 m0, s{S_M0X}, {xslot(m)*16384}"),
        ("salu", f"s_mov_b32 s{S_XSOFF}, {max(m,0)*1024}"),
    ] + [("vmem", f"buffer_load_dwordx4 v{(V_XH if m < 0 else V_XOFF)+k}, {sr(S_X,4)}, s{S_XSOFF} offen offset:{1024*k} {cfg.xflags} lds", f"X{m}") for k in range(4)]

def issue_w(q):
    return [
        ("salu", f"s_add_u32 m0, s{S_M0X}, {wslot(q)*16384}"),
        ("salu", f"s_mov_b32 s{S_WSOFF}, {q*65536}"),
    ] + [("vmem", f"buffer_load_dwordx4 v{V_WOFF+k}, {sr(S_W,4)}, s{S_WSOFF} offen offset:{1024*k} {cfg.wflags} lds", f"W{q}") for k in range(4)]

def emit(item):
    kind = item[0]
    if kind == "vmem": e.vmem(item[1], item[2])
    elif kind == "lds": e.lds(item[1], item[2])
    elif kind == "waitvm": e.wait(vm=item[1])
    elif kind == "waitlg": e.wait(lg=item[1])
    else: e.i(item[1])

def emit_all(items):
    for it in items: emit(it)

def xread(m, c):
    off = xslot(m)*16384 + 256*(c >> 3)
    return ("lds", f"ds_read_b128 {vr(V_XF + 4*(c & 3), 4)}, v{V_XA + (c & 7)} offset:{off}", f"x{m}_{c}")

def wread(q, cc, s):
    slot = wslot(q) - 4
    if slot < 4: base, off = V_WA0, slot*16384
    else: base, off = V_WA1, (slot-4)*16384
    off += 4096*cc + 256*s
    tap, c = q >> 2, (q & 3)*4 + cc
    a = (tap*16 + c)*4 + 2*s
    return ("lds", f"ds_read_b64_tr_b16 {ar(a,2)}, v{base} offset:{off}", f"w{q}")

def mfma(chain, c, first, last):
    tap = {"P": 2, "Q": 1, "R": 0}[chain]
    D = {"P": V_P, "Q": V_Q, "R": V_R}[chain]
    C = vr(D, 16)
    if first: C = {"P": vr(V_Q,16), "Q": vr(V_R,16), "R": "0"}[chain]
    if last and chain == "P": D = V_E
    A = ar((tap*16 + c)*4, 4)
    B = vr(V_XF + 4*(c & 3), 4)
    return ("mfma", f"v_mfma_f32_32x32x16_bf16 {vr(D,16)}, {A}, {B}, {C}")

def epilogue_ops(m):
    ops = []
    t = V_T
    for pr in range(4):
        i0, i1 = 2*pr, 2*pr + 1
        z0, z1, y0, y1, p0, p1 = t, t+1, t+2, t+3, t+4, t+5
        if pr & 1: z0, z1, y0, y1, p0, p1 = [x + 6 for x in (z0, z1, y0, y1, p0, p1)]
        ops += [
            (4, "valu", f"v_mul_f32 v{z0}, s{S_C1}, v{V_E+i0}"),
            (4, "valu", f"v_mul_f32 v{z1}, s{S_C1}, v{V_E+i1}"),
            (4, "valu", f"v_mul_f32 v{y0}, s{S_C2}, v{V_E+8+i0}"),
            (4, "valu", f"v_mul_f32 v{y1}, s{S_C2}, v{V_E+8+i1}"),
            (4, "valu", f"v_min_f32 v{z0}, s{S_CL}, v{z0}"),
            (4, "valu", f"v_min_f32 v{z1}, s{S_CL}, v{z1}"),
            (8, "valu", f"v_exp_f32 v{y0}, v{y0}"),
            (8, "valu", f"v_exp_f32 v{y1}, v{y1}"),
            (8, "valu", f"v_exp_f32 v{z0}, v{z0}"),
            (8, "valu", f"v_exp_f32 v{z1}, v{z1}"),
            (4, "valu", f"v_add_f32 v{p0}, 1.0, v{z0}"),
            (4, "valu", f"v_add_f32 v{p1}, 1.0, v{z1}"),
            (4, "valu", f"v_fmac_f32 v{p0}, v{p0}, v{y0}"),
            (4, "valu", f"v_fmac_f32 v{p1}, v{p1}, v{y1}"),
            (8, "valu", f"v_rcp_f32 v{p0}, v{p0}"),
            (8, "valu", f"v_rcp_f32 v{p1}, v{p1}"),
            (4, "nop", None),
            (4, "valu", f"v_fma_f32 v{z0}, -v{z0}, v{p0}, v{p0}"),
            (4, "valu", f"v_fma_f32 v{z1}, -v{z1}, v{p1}, v{p1}"),
            (4, "valu", f"v_cvt_pk_bf16_f32 v{V_OUT+pr}, v{z0}, v{z1}"),
        ]
    ops = [o for o in ops if o[1] != "nop"]
    ops.append((4, "salu", f"s_mov_b32 s{S_OSOFF}, {m*1024}"))
    ops.append((8, "vmem", f"buffer_store_dwordx4 {vr(V_OUT,4)}, v{V_OOFF}, {sr(S_O,4)}, s{S_OSOFF} offen {cfg.store_flags}", f"S{m}"))
    return ops

COST = {"salu": 4, "vmem": 12, "lds": 4, "waitvm": 4, "waitlg": 4, "bar": 4}

def step(m, chains, epi):
    nch = len(chains)
    ng = 16*nch
    gaps = [[] for _ in range(ng)]
    pre = [[] for _ in range(ng)]
    nxt = m + 1 <= 15
    for c in range(16):
        pre[nch*c].append(("waitlg", [f"x{m}_{c}"]))
        cc = c + cfg.pf
        if cc < 16: gaps[nch*c].append(xread(m, cc))
        elif nxt: gaps[nch*c].append(xread(m+1, cc-16))
    if nxt:
        bg = min(cfg.bar_gap * nch // 3, nch*(16-cfg.pf) - 1)
        gaps[bg].append(("waitvm", [f"X{m+1}"]))
        gaps[bg].append(("bar", "s_barrier"))
        if m + 3 <= 15:
            it = issue_x(m+3)
            gaps[bg+1] += it[:3]
            for k in range(1, 4): gaps[bg+1+k].append(it[2+k])
    if epi is not None:
        ops = epilogue_ops(epi)
        total = sum(o[0] for o in ops)
        g0 = 3 if nch == 3 else 4
        g1 = ng - 4 if nch > 1 else ng - 1
        fixed = [sum(COST[f[0]] for f in gaps[g]) + (sum(COST[f[0]] for f in pre[g+1]) if g+1 < ng else 0) for g in range(ng)]
        L = 0
        while sum(max(0, L - fixed[g]) for g in range(g0, g1)) < total + 8: L += 1
        k = 0; credit = 0
        for g in range(g0, g1):
            credit += max(0, L - fixed[g])
            while k < len(ops) and ops[k][0] <= credit + 2:
                credit -= ops[k][0]
                gaps[g].append(ops[k][1:]); k += 1
        while k < len(ops):
            gaps[g1-1].append(ops[k][1:]); k += 1
    g = 0
    start_instr = e.ninstr
    for c in range(16):
        for ch in chains:
            emit_all(pre[g])
            emit(mfma(ch, c, c == 0, c == 15))
            emit_all(gaps[g])
            g += 1

def gen():
    e.raw(f"; @launch grid=(256,1,1) block=(256,1,1) lds=163840")
    e.raw('.amdgcn_target "amdgcn-amd-amdhsa--gfx950"')
    e.raw(".text")
    e.raw(f".globl {KNAME}")
    e.raw(".p2align 8")
    e.raw(f".type {KNAME},@function")
    e.raw(f"{KNAME}:")
    e.i("s_cmp_ge_u32 s2, 256")
    e.i("s_cbranch_scc1 L_end")
    e.i("s_load_dwordx4 s[4:7], s[0:1], 0")
    e.i("s_load_dwordx4 s[8:11], s[0:1], 16")
    if cfg.stamps:
        e.i("s_load_dwordx2 s[42:43], s[0:1], 32")
        e.i("s_memtime s[100:101]")
        e.i("s_memrealtime s[96:97]")
    if cfg.spin:
        e.i("s_memrealtime s[96:97]")
    e.i("v_lshrrev_b32 v1, 6, v0")
    e.i("v_and_b32 v0, 63, v0")
    e.i(f"v_readfirstlane_b32 s{S_WAVE}, v1")
    e.i(f"s_and_b32 s{S_T0}, s2, 7")
    e.i(f"s_lshr_b32 s{S_T1}, s2, 3")
    e.i(f"s_and_b32 s{S_CG}, s{S_T1}, 3")
    e.i(f"s_lshr_b32 s{S_T1}, s{S_T1}, 2")
    e.i(f"s_lshl_b32 s{S_T0}, s{S_T0}, 3")
    e.i(f"s_add_u32 s{S_T0}, s{S_T0}, s{S_T1}")
    e.i(f"s_and_b32 s{S_BLK}, s{S_T0}, 15")
    e.i(f"s_lshr_b32 s{S_T1}, s{S_T0}, 4")
    e.i(f"s_and_b32 s{S_PAR}, s{S_T1}, 1")
    e.i(f"s_lshr_b32 s{S_B}, s{S_T1}, 1")
    e.i(f"s_mul_i32 s{S_T0}, s{S_B}, 16000")
    e.i(f"s_lshl_b32 s{S_T1}, s{S_BLK}, 10")
    e.i(f"s_add_u32 s{S_T0}, s{S_T0}, s{S_T1}")
    e.i(f"s_add_u32 s{S_T0}, s{S_T0}, s{S_PAR}")
    e.i(f"s_lshl_b32 s{S_T0}, s{S_T0}, 9")
    e.i(f"s_lshl_b32 s{S_M0X}, s{S_WAVE}, 12")
    e.i(f"s_mov_b32 s{S_C1}, 0x{f2u(-2.0*math.log2(math.e)):08x}")
    e.i(f"s_mov_b32 s{S_C2}, 0x{f2u(-math.log2(math.e)):08x}")
    e.i(f"s_mov_b32 s{S_CL}, 0x{f2u(32.0):08x}")
    s0, s1, s2_, s3 = V_S, V_S+1, V_S+2, V_S+3
    e.i(f"v_lshrrev_b32 v{s0}, 5, v0")
    e.i(f"v_and_b32 v{s1}, 31, v0")
    e.i(f"s_lshl_b32 s{S_T1}, s{S_WAVE}, 3")
    e.i(f"v_add_u32 v{s0}, s{S_T1}, v{s0}")
    e.i(f"s_cmp_eq_u32 s{S_BLK}, 15")
    e.i(f"s_cselect_b32 s{S_T2}, 20, 32")
    for k in range(4):
        e.i(f"v_add_u32 v{s2_}, {2*k}, v{s0}")
        e.i(f"v_and_b32 v{s3}, 15, v{s2_}")
        e.i(f"v_xor_b32 v{s3}, v{s3}, v{s1}")
        e.i(f"v_lshlrev_b32 v{s3}, 4, v{s3}")
        e.i(f"v_lshl_add_u32 v{s3}, v{s2_}, 14, v{s3}")
        e.i(f"v_add_u32 v{s3}, s{S_T0}, v{s3}")
        if k: e.i(f"v_subrev_u32 v{s3}, {1024*k}, v{s3}")
        e.i(f"v_cmp_gt_u32 vcc, s{S_T2}, v{s2_}")
        e.i(f"v_mov_b32 v{V_XOFF+k}, 0x80000000")
        e.i(f"s_nop 0")
        e.i(f"v_cndmask_b32 v{V_XOFF+k}, v{V_XOFF+k}, v{s3}, vcc")
    return

def f2u(x):
    import struct
    return struct.unpack("<I", struct.pack("<f", x))[0]

def gen_rest():
    s0, s1, s2_, s3 = V_S, V_S+1, V_S+2, V_S+3
    for k in range(4):
        e.i(f"v_subrev_u32 v{V_XH+k}, 2048, v{V_XOFF+k}")
    e.i(f"s_or_b32 s{S_T1}, s{S_BLK}, s{S_WAVE}")
    e.i(f"s_cmp_eq_u32 s{S_T1}, 0")
    e.i(f"s_cselect_b32 s{S_T1}, 32, 0")
    e.i(f"v_cmp_gt_u32 vcc, s{S_T1}, v0")
    e.i(f"v_mov_b32 v{s0}, 0x80000000")
    e.i(f"s_nop 0")
    e.i(f"v_cndmask_b32 v{V_XH}, v{V_XH}, v{s0}, vcc")
    e.i(f"v_lshrrev_b32 v{s0}, 4, v0")
    e.i(f"v_lshlrev_b32 v{s0}, 12, v{s0}")
    e.i(f"s_lshl_b32 s{S_T1}, s{S_WAVE}, 14")
    e.i(f"s_lshl_b32 s{S_T2}, s{S_CG}, 7")
    e.i(f"s_add_u32 s{S_T1}, s{S_T1}, s{S_T2}")
    e.i(f"v_add_u32 v{s0}, s{S_T1}, v{s0}")
    e.i(f"v_and_b32 v{s1}, 1, v0")
    e.i(f"v_lshl_add_u32 v{s0}, v{s1}, 4, v{s0}")
    e.i(f"v_bfe_u32 v{s1}, v0, 1, 3")
    for k in range(4):
        e.i(f"v_xor_b32 v{s2_}, {k}, v{s1}")
        e.i(f"v_and_b32 v{s3}, 3, v{s2_}")
        e.i(f"v_lshl_add_u32 v{V_WOFF+k}, v{s3}, 5, v{s0}")
        e.i(f"v_lshrrev_b32 v{s3}, 2, v{s2_}")
        e.i(f"v_lshl_add_u32 v{V_WOFF+k}, v{s3}, 9, v{V_WOFF+k}")

def gen_addr2():
    s0, s1, s2_, s3 = V_S, V_S+1, V_S+2, V_S+3
    e.i(f"v_and_b32 v{s0}, 31, v0")
    e.i(f"v_lshrrev_b32 v{s1}, 5, v0")
    e.i(f"v_and_b32 v{s2_}, 15, v{s0}")
    e.i(f"v_xor_b32 v{s2_}, v{s2_}, v{s1}")
    e.i(f"v_lshlrev_b32 v{s2_}, 4, v{s2_}")
    e.i(f"v_lshl_add_u32 v{V_XA}, v{s0}, 9, v{s2_}")
    for c in range(1, 8):
        e.i(f"v_xor_b32 v{V_XA+c}, {32*c}, v{V_XA}")
    e.i(f"v_lshlrev_b32 v{s2_}, 14, v{s0}")
    e.i(f"v_lshl_add_u32 v{s2_}, v{s1}, 4, v{s2_}")
    e.i(f"s_lshl_b32 s{S_T1}, s{S_CG}, 7")
    e.i(f"s_add_u32 s{S_T1}, s{S_T1}, s{S_T0}")
    e.i(f"s_lshl_b32 s3, s{S_WAVE}, 5")
    e.i(f"s_add_u32 s{S_T1}, s{S_T1}, s3")
    e.i(f"v_add_u32 v{s2_}, s{S_T1}, v{s2_}")
    e.i(f"v_cmp_gt_u32 vcc, s{S_T2+0}, v{s0}") if False else None
    e.i(f"s_cmp_eq_u32 s{S_BLK}, 15")
    e.i(f"s_cselect_b32 s{S_T2}, 20, 32")
    e.i(f"v_cmp_gt_u32 vcc, s{S_T2}, v{s0}")
    e.i(f"v_mov_b32 v{V_OOFF}, 0x80000000")
    e.i(f"s_nop 0")
    e.i(f"v_cndmask_b32 v{V_OOFF}, v{V_OOFF}, v{s2_}, vcc")
    e.i(f"v_bfe_u32 v{s0}, v0, 2, 2")
    e.i(f"v_bfe_u32 v{s1}, v0, 4, 1")
    e.i(f"v_lshlrev_b32 v{s1}, 2, v{s1}")
    e.i(f"v_add_u32 v{s1}, s{S_WAVE}, v{s1}")
    e.i(f"v_xor_b32 v{s1}, v{s1}, v{s0}")
    e.i(f"v_lshlrev_b32 v{s1}, 5, v{s1}")
    e.i(f"v_lshl_add_u32 v{s1}, v{s0}, 10, v{s1}")
    e.i(f"v_lshrrev_b32 v{s0}, 5, v0")
    e.i(f"v_lshl_add_u32 v{s1}, v{s0}, 9, v{s1}")
    e.i(f"v_and_b32 v{s0}, 1, v0")
    e.i(f"v_lshl_add_u32 v{s1}, v{s0}, 4, v{s1}")
    e.i(f"v_and_b32 v{s0}, 2, v0")
    e.i(f"v_lshl_add_u32 v{s1}, v{s0}, 2, v{s1}")
    e.i(f"v_add_u32 v{V_WA0}, 0x10000, v{s1}")
    e.i(f"v_add_u32 v{V_WA1}, 0x20000, v{s1}")

def srds():
    for (S, lo, nbytes) in ((S_X, 4, 16384000), (S_W, 6, 786432), (S_O, 8, 16384000)):
        e.i(f"s_mov_b32 s{S}, s{lo}")
        e.i(f"s_and_b32 s{S+1}, s{lo+1}, 0xffff")
        e.i(f"s_mov_b32 s{S+2}, {nbytes}")
        e.i(f"s_mov_b32 s{S+3}, 0x20000")

def main():
    gen()
    gen_rest()
    e.i("s_waitcnt lgkmcnt(0)")
    srds()
    e.stamp("start-issue")
    it = issue_x(-2); emit_all(it)
    for q in range(4): emit_all(issue_w(q))
    it = issue_x(-1); it[1] = ("salu", f"s_mov_b32 s{S_XSOFF}, 1024"); emit_all(it)
    for q in (4, 5): emit_all(issue_w(q))
    gen_addr2()
    if cfg.stamps: e.wait_lg_all()
    later = {1: [("W", 6)], 2: [("W", 7)], 3: [("X", 0), ("W", 8)], 4: [("W", 9)], 5: [("W", 10)], 6: [("W", 11)],
             7: [("X", 1)], 8: [("X", 2)], 9: [("X", 3)]}
    for q in range(12):
        m = q // 4 - 2
        chains = ["R", "QR", "PQR"][q // 4]
        tags = [f"W{q}"] + ([f"X{m}"] if q % 4 == 0 else [])
        e.wait(vm=tags)
        e.i("s_barrier")
        if q % 4 == 0: e.stamp(f"phase q={q} data arrived")
        for (kind, idx) in later.get(q, []):
            emit_all(issue_x(idx) if kind == "X" else issue_w(idx))
        for cc in range(4):
            for s in range(2): emit(wread(q, cc, s))
        for cc in range(4): emit(xread(m, (q & 3)*4 + cc))
        e.wait_lg_all()
        for cc in range(4):
            c = (q & 3)*4 + cc
            for ch in chains: emit(mfma(ch, c, c == 0, c == 15))
    e.wait(vm=["X1"])
    e.i("s_barrier")
    e.stamp("enter steady")
    if cfg.stamps: e.wait_lg_all()
    for c in range(cfg.pf): emit(xread(1, c))
    for m in range(1, 14):
        step(m, ["P", "Q", "R"], m-1)
    e.stamp("steady done")
    if cfg.stamps: e.wait_lg_all()
    step(14, ["P", "Q"], 13)
    step(15, ["P"], 14)
    e.stamp("mfma done")
    e.i("s_nop 15")
    for o in epilogue_ops(15): emit(o[1:])
    if cfg.stamps:
        e.i("s_waitcnt vmcnt(0) lgkmcnt(0)")
        e.stamp("end")
        e.i("s_memrealtime s[98:99]")
        e.i("s_waitcnt lgkmcnt(0)")
        e.i(f"s_lshl_b32 s3, s2, 2")
        e.i(f"s_add_u32 s3, s3, s{S_WAVE}")
        e.i(f"s_lshl_b32 s3, s3, 8")
        e.i(f"s_add_u32 s42, s42, s3")
        e.i(f"s_addc_u32 s43, s43, 0")
        e.i(f"v_mov_b32 v0, 0")
        e.i(f"v_mov_b32 v2, s100"); e.i(f"v_mov_b32 v3, s101")
        e.i(f"global_store_dwordx2 v0, v[2:3], s[42:43] offset:0")
        for k in range(e.nstamp):
            e.i(f"v_mov_b32 v2, s{44+2*k}"); e.i(f"v_mov_b32 v3, s{45+2*k}")
            e.i(f"global_store_dwordx2 v0, v[2:3], s[42:43] offset:{8*(k+1)}")
            e.i("s_nop 1")
        e.i(f"v_mov_b32 v2, s96"); e.i(f"v_mov_b32 v3, s97")
        e.i(f"global_store_dwordx2 v0, v[2:3], s[42:43] offset:232")
        e.i("s_nop 1")
        e.i(f"v_mov_b32 v2, s98"); e.i(f"v_mov_b32 v3, s99")
        e.i(f"global_store_dwordx2 v0, v[2:3], s[42:43] offset:240")
        e.i("s_nop 1")
        e.i("s_getreg_b32 s3, hwreg(HW_REG_XCC_ID)")
        e.i("v_mov_b32 v2, s3")
        e.i("s_getreg_b32 s3, hwreg(HW_REG_HW_ID)")
        e.i("v_mov_b32 v3, s3")
        e.i(f"global_store_dwordx2 v0, v[2:3], s[42:43] offset:248")
    if cfg.spin:
        e.i("s_waitcnt vmcnt(0) lgkmcnt(0)")
        e.i(f"s_add_u32 s96, s96, {cfg.spin}")
        e.raw("L_spin:")
        e.i("s_memrealtime s[98:99]")
        e.i("s_waitcnt lgkmcnt(0)")
        e.i("s_sub_u32 s3, s98, s96")
        e.i("s_cmp_lt_i32 s3, 0")
        e.i("s_cbranch_scc1 L_spin")
    e.raw("L_end:")
    e.i("s_endpgm")
    e.raw('.section .rodata,"a"')
    e.raw(".p2align 6")
    e.raw(f".amdhsa_kernel {KNAME}")
    e.raw(f"  .amdhsa_next_free_vgpr {NV + 192}")
    e.raw("  .amdhsa_next_free_sgpr 102")
    e.raw(f"  .amdhsa_accum_offset {NV}")
    e.raw("  .amdhsa_group_segment_fixed_size 0")
    e.raw("  .amdhsa_kernarg_size 40")
    e.raw("  .amdhsa_user_sgpr_count 2")
    e.raw("  .amdhsa_user_sgpr_kernarg_segment_ptr 1")
    e.raw("  .amdhsa_system_sgpr_workgroup_id_x 1")
    e.raw("  .amdhsa_float_denorm_mode_32 3")
    e.raw(".end_amdhsa_kernel")
    hdr = open("standalone__autoregressive_conv_wavernn__speech.s.ref").read().split("; Override")[0]
    open(sys.argv[1], "w").write(hdr + "\n".join(e.lines) + "\n")

main()
```

```python
import sys, math

KNAME = "standalone__autoregressive_conv_wavernn__speech_kernel"

class Cfg:
    stamps = False
    store_flags = ""
    xflags = ""
    wflags = ""
    bar_gap = 30
    pf = 3
    l2pf = 0
    spin = 0

cfg = Cfg()
for a in sys.argv[2:]:
    k, v = a.split("=", 1)
    old = getattr(cfg, k)
    if isinstance(old, bool): v = v in ("1", "true", "True")
    elif isinstance(old, int): v = int(v)
    setattr(cfg, k, v)

S_X, S_W, S_O = 12, 16, 20
S_WAVE, S_CG, S_BLK, S_B, S_PAR = 24, 25, 26, 27, 28
S_T0, S_T1, S_T2 = 29, 30, 31
S_C1, S_C2, S_CL = 32, 33, 34
S_XSOFF, S_OSOFF, S_WSOFF = 35, 36, 37
S_M0X, S_M0W = 38, 39
S_STAMP = 40
V_XOFF = 1
V_WOFF = 5
V_XA = 9
V_WA0, V_WA1 = 17, 18
V_OOFF = 19
V_XF = 20
V_P, V_Q, V_R, V_E = 36, 52, 68, 84
V_T = 100
V_OUT = 112
V_XH = 116
V_S = 120
NV = 128

def vr(b, n): return f"v[{b}:{b+n-1}]"
def ar(b, n): return f"a[{b}:{b+n-1}]"
def sr(b, n): return f"s[{b}:{b+n-1}]"

class E:
    def __init__(self):
        self.lines = []
        self.vm = []
        self.lg = []
        self.ninstr = 0
        self.nstamp = 0
    def raw(self, s):
        self.lines.append(s)
    def i(self, s):
        self.lines.append("    " + s)
        self.ninstr += 1
    def vmem(self, s, tag):
        self.i(s); self.vm.append(tag)
        assert len(self.vm) <= 63, "vmcnt overflow"
    def lds(self, s, tag):
        self.i(s); self.lg.append(tag)
        assert len(self.lg) <= 15, "lgkmcnt overflow"
    def need_vm(self, tags):
        idx = -1
        for k, t in enumerate(self.vm):
            if t in tags: idx = k
        if idx < 0: return None
        n = len(self.vm) - 1 - idx
        self.vm = self.vm[idx+1:]
        return n
    def need_lg(self, tags):
        idx = -1
        for k, t in enumerate(self.lg):
            if t in tags: idx = k
        if idx < 0: return None
        n = len(self.lg) - 1 - idx
        self.lg = self.lg[idx+1:]
        return n
    def wait(self, vm=None, lg=None):
        n = self.need_vm(vm) if vm else None
        l = self.need_lg(lg) if lg else None
        parts = []
        if n is not None: parts.append(f"vmcnt({n})")
        if l is not None: parts.append(f"lgkmcnt({l})")
        if parts: self.i("s_waitcnt " + " ".join(parts))
    def wait_lg_all(self):
        if self.lg:
            self.lg = []
            self.i("s_waitcnt lgkmcnt(0)")
    def stamp(self, name):
        if not cfg.stamps: return
        k = self.nstamp; self.nstamp += 1
        assert 44 + 4*k + 3 < 96
        self.wait_lg_all()
        self.i(f"s_memtime s[{44+4*k}:{45+4*k}]")
        self.i(f"s_memrealtime s[{46+4*k}:{47+4*k}]")
        self.i("s_waitcnt lgkmcnt(0)")

e = E()

def xslot(m): return (m + 2) & 3
def wslot(q): return 4 + (q % 6)

def issue_x(m):
    return [
        ("salu", f"s_add_u32 m0, s{S_M0X}, {xslot(m)*16384}"),
        ("salu", f"s_mov_b32 s{S_XSOFF}, {max(m,0)*1024}"),
    ] + [("vmem", f"buffer_load_dwordx4 v{(V_XH if m < 0 else V_XOFF)+k}, {sr(S_X,4)}, s{S_XSOFF} offen offset:{1024*k} {cfg.xflags} lds", f"X{m}") for k in range(4)]

def issue_w(q):
    return [
        ("salu", f"s_add_u32 m0, s{S_M0X}, {wslot(q)*16384}"),
        ("salu", f"s_mov_b32 s{S_WSOFF}, {q*65536}"),
    ] + [("vmem", f"buffer_load_dwordx4 v{V_WOFF+k}, {sr(S_W,4)}, s{S_WSOFF} offen offset:{1024*k} {cfg.wflags} lds", f"W{q}") for k in range(4)]

def emit(item):
    kind = item[0]
    if kind == "vmem": e.vmem(item[1], item[2])
    elif kind == "lds": e.lds(item[1], item[2])
    elif kind == "waitvm": e.wait(vm=item[1])
    elif kind == "waitlg": e.wait(lg=item[1])
    else: e.i(item[1])

def emit_all(items):
    for it in items: emit(it)

def xread(m, c):
    off = xslot(m)*16384 + 256*(c >> 3)
    return ("lds", f"ds_read_b128 {vr(V_XF + 4*(c & 3), 4)}, v{V_XA + (c & 7)} offset:{off}", f"x{m}_{c}")

def wread(q, cc, s):
    slot = wslot(q) - 4
    if slot < 4: base, off = V_WA0, slot*16384
    else: base, off = V_WA1, (slot-4)*16384
    off += 4096*cc + 256*s
    tap, c = q >> 2, (q & 3)*4 + cc
    a = (tap*16 + c)*4 + 2*s
    return ("lds", f"ds_read_b64_tr_b16 {ar(a,2)}, v{base} offset:{off}", f"w{q}")

def mfma(chain, c, first, last):
    tap = {"P": 2, "Q": 1, "R": 0}[chain]
    D = {"P": V_P, "Q": V_Q, "R": V_R}[chain]
    C = vr(D, 16)
    if first: C = {"P": vr(V_Q,16), "Q": vr(V_R,16), "R": "0"}[chain]
    if last and chain == "P": D = V_E
    A = ar((tap*16 + c)*4, 4)
    B = vr(V_XF + 4*(c & 3), 4)
    return ("mfma", f"v_mfma_f32_32x32x16_bf16 {vr(D,16)}, {A}, {B}, {C}")

def epilogue_ops(m):
    ops = []
    t = V_T
    for pr in range(4):
        i0, i1 = 2*pr, 2*pr + 1
        z0, z1, y0, y1, p0, p1 = t, t+1, t+2, t+3, t+4, t+5
        if pr & 1: z0, z1, y0, y1, p0, p1 = [x + 6 for x in (z0, z1, y0, y1, p0, p1)]
        ops += [
            (4, "valu", f"v_mul_f32 v{z0}, s{S_C1}, v{V_E+i0}"),
            (4, "valu", f"v_mul_f32 v{z1}, s{S_C1}, v{V_E+i1}"),
            (4, "valu", f"v_mul_f32 v{y0}, s{S_C2}, v{V_E+8+i0}"),
            (4, "valu", f"v_mul_f32 v{y1}, s{S_C2}, v{V_E+8+i1}"),
            (4, "valu", f"v_min_f32 v{z0}, s{S_CL}, v{z0}"),
            (4, "valu", f"v_min_f32 v{z1}, s{S_CL}, v{z1}"),
            (8, "valu", f"v_exp_f32 v{y0}, v{y0}"),
            (8, "valu", f"v_exp_f32 v{y1}, v{y1}"),
            (8, "valu", f"v_exp_f32 v{z0}, v{z0}"),
            (8, "valu", f"v_exp_f32 v{z1}, v{z1}"),
            (4, "valu", f"v_add_f32 v{p0}, 1.0, v{z0}"),
            (4, "valu", f"v_add_f32 v{p1}, 1.0, v{z1}"),
            (4, "valu", f"v_fmac_f32 v{p0}, v{p0}, v{y0}"),
            (4, "valu", f"v_fmac_f32 v{p1}, v{p1}, v{y1}"),
            (8, "valu", f"v_rcp_f32 v{p0}, v{p0}"),
            (8, "valu", f"v_rcp_f32 v{p1}, v{p1}"),
            (4, "nop", None),
            (4, "valu", f"v_fma_f32 v{z0}, -v{z0}, v{p0}, v{p0}"),
            (4, "valu", f"v_fma_f32 v{z1}, -v{z1}, v{p1}, v{p1}"),
            (4, "valu", f"v_cvt_pk_bf16_f32 v{V_OUT+pr}, v{z0}, v{z1}"),
        ]
    ops = [o for o in ops if o[1] != "nop"]
    ops.append((4, "salu", f"s_mov_b32 s{S_OSOFF}, {m*1024}"))
    ops.append((8, "vmem", f"buffer_store_dwordx4 {vr(V_OUT,4)}, v{V_OOFF}, {sr(S_O,4)}, s{S_OSOFF} offen {cfg.store_flags}", f"S{m}"))
    return ops

COST = {"salu": 4, "vmem": 12, "lds": 4, "waitvm": 4, "waitlg": 4, "bar": 4}

def step(m, chains, epi):
    nch = len(chains)
    ng = 16*nch
    gaps = [[] for _ in range(ng)]
    pre = [[] for _ in range(ng)]
    nxt = m + 1 <= 15
    for c in range(16):
        pre[nch*c].append(("waitlg", [f"x{m}_{c}"]))
        cc = c + cfg.pf
        if cc < 16: gaps[nch*c].append(xread(m, cc))
        elif nxt: gaps[nch*c].append(xread(m+1, cc-16))
    if nxt:
        bg = min(cfg.bar_gap * nch // 3, nch*(16-cfg.pf) - 1)
        gaps[bg].append(("waitvm", [f"X{m+1}"]))
        gaps[bg].append(("bar", "s_barrier"))
        if m + 3 <= 15:
            it = issue_x(m+3)
            gaps[bg+1] += it[:3]
            for k in range(1, 4): gaps[bg+1+k].append(it[2+k])
    if epi is not None:
        ops = epilogue_ops(epi)
        total = sum(o[0] for o in ops)
        g0 = 3 if nch == 3 else 4
        g1 = ng - 4 if nch > 1 else ng - 1
        fixed = [sum(COST[f[0]] for f in gaps[g]) + (sum(COST[f[0]] for f in pre[g+1]) if g+1 < ng else 0) for g in range(ng)]
        L = 0
        while sum(max(0, L - fixed[g]) for g in range(g0, g1)) < total + 8: L += 1
        k = 0; credit = 0
        for g in range(g0, g1):
            credit += max(0, L - fixed[g])
            while k < len(ops) and ops[k][0] <= credit + 2:
                credit -= ops[k][0]
                gaps[g].append(ops[k][1:]); k += 1
        while k < len(ops):
            gaps[g1-1].append(ops[k][1:]); k += 1
    g = 0
    start_instr = e.ninstr
    for c in range(16):
        for ch in chains:
            emit_all(pre[g])
            emit(mfma(ch, c, c == 0, c == 15))
            emit_all(gaps[g])
            g += 1

def gen():
    e.raw(f"; @launch grid=(256,1,1) block=(256,1,1) lds=163840")
    e.raw('.amdgcn_target "amdgcn-amd-amdhsa--gfx950"')
    e.raw(".text")
    e.raw(f".globl {KNAME}")
    e.raw(".p2align 8")
    e.raw(f".type {KNAME},@function")
    e.raw(f"{KNAME}:")
    e.i("s_cmp_ge_u32 s2, 256")
    e.i("s_cbranch_scc1 L_end")
    e.i("s_load_dwordx4 s[4:7], s[0:1], 0")
    e.i("s_load_dwordx4 s[8:11], s[0:1], 16")
    if cfg.stamps:
        e.i("s_load_dwordx2 s[42:43], s[0:1], 32")
        e.i("s_memtime s[100:101]")
        e.i("s_memrealtime s[96:97]")
    if cfg.spin:
        e.i("s_memrealtime s[96:97]")
    e.i("v_lshrrev_b32 v1, 6, v0")
    e.i("v_and_b32 v0, 63, v0")
    e.i(f"v_readfirstlane_b32 s{S_WAVE}, v1")
    e.i(f"s_and_b32 s{S_T0}, s2, 7")
    e.i(f"s_lshr_b32 s{S_T1}, s2, 3")
    e.i(f"s_and_b32 s{S_CG}, s{S_T1}, 3")
    e.i(f"s_lshr_b32 s{S_T1}, s{S_T1}, 2")
    e.i(f"s_lshl_b32 s{S_T0}, s{S_T0}, 3")
    e.i(f"s_add_u32 s{S_T0}, s{S_T0}, s{S_T1}")
    e.i(f"s_and_b32 s{S_BLK}, s{S_T0}, 15")
    e.i(f"s_lshr_b32 s{S_T1}, s{S_T0}, 4")
    e.i(f"s_and_b32 s{S_PAR}, s{S_T1}, 1")
    e.i(f"s_lshr_b32 s{S_B}, s{S_T1}, 1")
    e.i(f"s_mul_i32 s{S_T0}, s{S_B}, 16000")
    e.i(f"s_lshl_b32 s{S_T1}, s{S_BLK}, 10")
    e.i(f"s_add_u32 s{S_T0}, s{S_T0}, s{S_T1}")
    e.i(f"s_add_u32 s{S_T0}, s{S_T0}, s{S_PAR}")
    e.i(f"s_lshl_b32 s{S_T0}, s{S_T0}, 9")
    e.i(f"s_lshl_b32 s{S_M0X}, s{S_WAVE}, 12")
    e.i(f"s_mov_b32 s{S_C1}, 0x{f2u(-2.0*math.log2(math.e)):08x}")
    e.i(f"s_mov_b32 s{S_C2}, 0x{f2u(-math.log2(math.e)):08x}")
    e.i(f"s_mov_b32 s{S_CL}, 0x{f2u(32.0):08x}")
    s0, s1, s2_, s3 = V_S, V_S+1, V_S+2, V_S+3
    e.i(f"v_lshrrev_b32 v{s0}, 5, v0")
    e.i(f"v_and_b32 v{s1}, 31, v0")
    e.i(f"s_lshl_b32 s{S_T1}, s{S_WAVE}, 3")
    e.i(f"v_add_u32 v{s0}, s{S_T1}, v{s0}")
    e.i(f"s_cmp_eq_u32 s{S_BLK}, 15")
    e.i(f"s_cselect_b32 s{S_T2}, 20, 32")
    for k in range(4):
        e.i(f"v_add_u32 v{s2_}, {2*k}, v{s0}")
        e.i(f"v_and_b32 v{s3}, 15, v{s2_}")
        e.i(f"v_xor_b32 v{s3}, v{s3}, v{s1}")
        e.i(f"v_lshlrev_b32 v{s3}, 4, v{s3}")
        e.i(f"v_lshl_add_u32 v{s3}, v{s2_}, 14, v{s3}")
        e.i(f"v_add_u32 v{s3}, s{S_T0}, v{s3}")
        if k: e.i(f"v_subrev_u32 v{s3}, {1024*k}, v{s3}")
        e.i(f"v_cmp_gt_u32 vcc, s{S_T2}, v{s2_}")
        e.i(f"v_mov_b32 v{V_XOFF+k}, 0x80000000")
        e.i(f"s_nop 0")
        e.i(f"v_cndmask_b32 v{V_XOFF+k}, v{V_XOFF+k}, v{s3}, vcc")
    return

def f2u(x):
    import struct
    return struct.unpack("<I", struct.pack("<f", x))[0]

def gen_rest():
    s0, s1, s2_, s3 = V_S, V_S+1, V_S+2, V_S+3
    for k in range(4):
        e.i(f"v_subrev_u32 v{V_XH+k}, 2048, v{V_XOFF+k}")
    e.i(f"s_or_b32 s{S_T1}, s{S_BLK}, s{S_WAVE}")
    e.i(f"s_cmp_eq_u32 s{S_T1}, 0")
    e.i(f"s_cselect_b32 s{S_T1}, 32, 0")
    e.i(f"v_cmp_gt_u32 vcc, s{S_T1}, v0")
    e.i(f"v_mov_b32 v{s0}, 0x80000000")
    e.i(f"s_nop 0")
    e.i(f"v_cndmask_b32 v{V_XH}, v{V_XH}, v{s0}, vcc")
    e.i(f"v_lshrrev_b32 v{s0}, 4, v0")
    e.i(f"v_lshlrev_b32 v{s0}, 12, v{s0}")
    e.i(f"s_lshl_b32 s{S_T1}, s{S_WAVE}, 14")
    e.i(f"s_lshl_b32 s{S_T2}, s{S_CG}, 7")
    e.i(f"s_add_u32 s{S_T1}, s{S_T1}, s{S_T2}")
    e.i(f"v_add_u32 v{s0}, s{S_T1}, v{s0}")
    e.i(f"v_and_b32 v{s1}, 1, v0")
    e.i(f"v_lshl_add_u32 v{s0}, v{s1}, 4, v{s0}")
    e.i(f"v_bfe_u32 v{s1}, v0, 1, 3")
    for k in range(4):
        e.i(f"v_xor_b32 v{s2_}, {k}, v{s1}")
        e.i(f"v_and_b32 v{s3}, 3, v{s2_}")
        e.i(f"v_lshl_add_u32 v{V_WOFF+k}, v{s3}, 5, v{s0}")
        e.i(f"v_lshrrev_b32 v{s3}, 2, v{s2_}")
        e.i(f"v_lshl_add_u32 v{V_WOFF+k}, v{s3}, 9, v{V_WOFF+k}")

def gen_addr2():
    s0, s1, s2_, s3 = V_S, V_S+1, V_S+2, V_S+3
    e.i(f"v_and_b32 v{s0}, 31, v0")
    e.i(f"v_lshrrev_b32 v{s1}, 5, v0")
    e.i(f"v_and_b32 v{s2_}, 15, v{s0}")
    e.i(f"v_xor_b32 v{s2_}, v{s2_}, v{s1}")
    e.i(f"v_lshlrev_b32 v{s2_}, 4, v{s2_}")
    e.i(f"v_lshl_add_u32 v{V_XA}, v{s0}, 9, v{s2_}")
    for c in range(1, 8):
        e.i(f"v_xor_b32 v{V_XA+c}, {32*c}, v{V_XA}")
    e.i(f"v_lshlrev_b32 v{s2_}, 14, v{s0}")
    e.i(f"v_lshl_add_u32 v{s2_}, v{s1}, 4, v{s2_}")
    e.i(f"s_lshl_b32 s{S_T1}, s{S_CG}, 7")
    e.i(f"s_add_u32 s{S_T1}, s{S_T1}, s{S_T0}")
    e.i(f"s_lshl_b32 s3, s{S_WAVE}, 5")
    e.i(f"s_add_u32 s{S_T1}, s{S_T1}, s3")
    e.i(f"v_add_u32 v{s2_}, s{S_T1}, v{s2_}")
    e.i(f"v_cmp_gt_u32 vcc, s{S_T2+0}, v{s0}") if False else None
    e.i(f"s_cmp_eq_u32 s{S_BLK}, 15")
    e.i(f"s_cselect_b32 s{S_T2}, 20, 32")
    e.i(f"v_cmp_gt_u32 vcc, s{S_T2}, v{s0}")
    e.i(f"v_mov_b32 v{V_OOFF}, 0x80000000")
    e.i(f"s_nop 0")
    e.i(f"v_cndmask_b32 v{V_OOFF}, v{V_OOFF}, v{s2_}, vcc")
    e.i(f"v_bfe_u32 v{s0}, v0, 2, 2")
    e.i(f"v_bfe_u32 v{s1}, v0, 4, 1")
    e.i(f"v_lshlrev_b32 v{s1}, 2, v{s1}")
    e.i(f"v_add_u32 v{s1}, s{S_WAVE}, v{s1}")
    e.i(f"v_xor_b32 v{s1}, v{s1}, v{s0}")
    e.i(f"v_lshlrev_b32 v{s1}, 5, v{s1}")
    e.i(f"v_lshl_add_u32 v{s1}, v{s0}, 10, v{s1}")
    e.i(f"v_lshrrev_b32 v{s0}, 5, v0")
    e.i(f"v_lshl_add_u32 v{s1}, v{s0}, 9, v{s1}")
    e.i(f"v_and_b32 v{s0}, 1, v0")
    e.i(f"v_lshl_add_u32 v{s1}, v{s0}, 4, v{s1}")
    e.i(f"v_and_b32 v{s0}, 2, v0")
    e.i(f"v_lshl_add_u32 v{s1}, v{s0}, 2, v{s1}")
    e.i(f"v_add_u32 v{V_WA0}, 0x10000, v{s1}")
    e.i(f"v_add_u32 v{V_WA1}, 0x20000, v{s1}")

def srds():
    for (S, lo, nbytes) in ((S_X, 4, 16384000), (S_W, 6, 786432), (S_O, 8, 16384000)):
        e.i(f"s_mov_b32 s{S}, s{lo}")
        e.i(f"s_and_b32 s{S+1}, s{lo+1}, 0xffff")
        e.i(f"s_mov_b32 s{S+2}, {nbytes}")
        e.i(f"s_mov_b32 s{S+3}, 0x20000")

def main():
    gen()
    gen_rest()
    e.i("s_waitcnt lgkmcnt(0)")
    srds()
    e.stamp("start-issue")
    if cfg.l2pf:
        e.i("s_lshr_b32 s3, s2, 3")
        e.i("s_lshl_b32 s3, s3, 2")
        e.i(f"s_add_u32 s3, s3, s{S_WAVE}")
        e.i("s_lshl_b32 s3, s3, 6")
        e.i(f"v_add_u32 v{V_S+6}, s3, v0")
        e.i(f"v_lshlrev_b32 v{V_S+6}, 7, v{V_S+6}")
        if cfg.l2pf == 1:
            e.vmem(f"buffer_load_dword v{V_S+7}, v{V_S+6}, {sr(S_W,4)}, 0 offen", "PF")
    it = issue_x(-2); emit_all(it)
    for q in range(4): emit_all(issue_w(q))
    if cfg.l2pf == 2:
        e.vmem(f"buffer_load_dword v{V_S+7}, v{V_S+6}, {sr(S_W,4)}, 0 offen", "PF")
    it = issue_x(-1); it[1] = ("salu", f"s_mov_b32 s{S_XSOFF}, 1024"); emit_all(it)
    for q in (4, 5): emit_all(issue_w(q))
    gen_addr2()
    if cfg.stamps: e.wait_lg_all()
    later = {1: [("W", 6)], 2: [("W", 7)], 3: [("X", 0), ("W", 8)], 4: [("W", 9)], 5: [("W", 10)], 6: [("W", 11)],
             7: [("X", 1)], 8: [("X", 2)], 9: [("X", 3)]}
    for q in range(12):
        m = q // 4 - 2
        chains = ["R", "QR", "PQR"][q // 4]
        tags = [f"W{q}"] + ([f"X{m}"] if q % 4 == 0 else [])
        e.wait(vm=tags)
        e.i("s_barrier")
        if q % 4 == 0: e.stamp(f"phase q={q} data arrived")
        for (kind, idx) in later.get(q, []):
            emit_all(issue_x(idx) if kind == "X" else issue_w(idx))
        for cc in range(4):
            for s in range(2): emit(wread(q, cc, s))
        for cc in range(4): emit(xread(m, (q & 3)*4 + cc))
        e.wait_lg_all()
        for cc in range(4):
            c = (q & 3)*4 + cc
            for ch in chains: emit(mfma(ch, c, c == 0, c == 15))
    e.wait(vm=["X1"])
    e.i("s_barrier")
    e.stamp("enter steady")
    if cfg.stamps: e.wait_lg_all()
    for c in range(cfg.pf): emit(xread(1, c))
    for m in range(1, 14):
        step(m, ["P", "Q", "R"], m-1)
    e.stamp("steady done")
    if cfg.stamps: e.wait_lg_all()
    step(14, ["P", "Q"], 13)
    step(15, ["P"], 14)
    e.stamp("mfma done")
    e.i("s_nop 15")
    for o in epilogue_ops(15): emit(o[1:])
    if cfg.stamps:
        e.i("s_waitcnt vmcnt(0) lgkmcnt(0)")
        e.stamp("end")
        e.i("s_memrealtime s[98:99]")
        e.i("s_waitcnt lgkmcnt(0)")
        e.i(f"s_lshl_b32 s3, s2, 2")
        e.i(f"s_add_u32 s3, s3, s{S_WAVE}")
        e.i(f"s_lshl_b32 s3, s3, 8")
        e.i(f"s_add_u32 s42, s42, s3")
        e.i(f"s_addc_u32 s43, s43, 0")
        e.i(f"v_mov_b32 v0, 0")
        e.i(f"v_mov_b32 v2, s100"); e.i(f"v_mov_b32 v3, s101")
        e.i(f"global_store_dwordx2 v0, v[2:3], s[42:43] offset:0")
        for k in range(e.nstamp):
            e.i(f"v_mov_b32 v2, s{44+4*k}"); e.i(f"v_mov_b32 v3, s{45+4*k}")
            e.i(f"global_store_dwordx2 v0, v[2:3], s[42:43] offset:{8*(k+1)}")
            e.i("s_nop 1")
            e.i(f"v_mov_b32 v2, s{46+4*k}"); e.i(f"v_mov_b32 v3, s{47+4*k}")
            e.i(f"global_store_dwordx2 v0, v[2:3], s[42:43] offset:{8*(k+1)+112}")
            e.i("s_nop 1")
        e.i(f"v_mov_b32 v2, s96"); e.i(f"v_mov_b32 v3, s97")
        e.i(f"global_store_dwordx2 v0, v[2:3], s[42:43] offset:232")
        e.i("s_nop 1")
        e.i(f"v_mov_b32 v2, s98"); e.i(f"v_mov_b32 v3, s99")
        e.i(f"global_store_dwordx2 v0, v[2:3], s[42:43] offset:240")
        e.i("s_nop 1")
        e.i("s_getreg_b32 s3, hwreg(HW_REG_XCC_ID)")
        e.i("v_mov_b32 v2, s3")
        e.i("s_getreg_b32 s3, hwreg(HW_REG_HW_ID)")
        e.i("v_mov_b32 v3, s3")
        e.i(f"global_store_dwordx2 v0, v[2:3], s[42:43] offset:248")
    if cfg.spin:
        e.i("s_waitcnt vmcnt(0) lgkmcnt(0)")
        e.i(f"s_add_u32 s96, s96, {cfg.spin}")
        e.raw("L_spin:")
        e.i("s_memrealtime s[98:99]")
        e.i("s_waitcnt lgkmcnt(0)")
        e.i("s_sub_u32 s3, s98, s96")
        e.i("s_cmp_lt_i32 s3, 0")
        e.i("s_cbranch_scc1 L_spin")
    e.raw("L_end:")
    e.i("s_endpgm")
    e.raw('.section .rodata,"a"')
    e.raw(".p2align 6")
    e.raw(f".amdhsa_kernel {KNAME}")
    e.raw(f"  .amdhsa_next_free_vgpr {NV + 192}")
    e.raw("  .amdhsa_next_free_sgpr 102")
    e.raw(f"  .amdhsa_accum_offset {NV}")
    e.raw("  .amdhsa_group_segment_fixed_size 0")
    e.raw("  .amdhsa_kernarg_size 40")
    e.raw("  .amdhsa_user_sgpr_count 2")
    e.raw("  .amdhsa_user_sgpr_kernarg_segment_ptr 1")
    e.raw("  .amdhsa_system_sgpr_workgroup_id_x 1")
    e.raw("  .amdhsa_float_denorm_mode_32 3")
    e.raw(".end_amdhsa_kernel")
    hdr = open("standalone__autoregressive_conv_wavernn__speech.s.ref").read().split("; Override")[0]
    open(sys.argv[1], "w").write(hdr + "\n".join(e.lines) + "\n")

main()
```

```python
import sys, math, struct
from collections import deque

KNAME = "standalone__autoregressive_conv_wavernn__speech_kernel"

class Cfg:
    stamps = False
    store_flags = ""
    tail_flags = ""
    xflags = ""
    wflags = ""
    omode = "direct"
    bar_gap = 60
    pf = 1
    ring = 3
    order = "A"
    lat = 800
    ahead = 1
    pace = 64
    ldslat = 140
    items = "simple"
    epi_start = 2
    dma_gap = 2
    tail_split = 0
    l2pf = 0

cfg = Cfg()
for a in sys.argv[2:]:
    k, v = a.split("=", 1)
    old = getattr(cfg, k)
    if isinstance(old, bool): v = v in ("1", "true", "True")
    elif isinstance(old, int): v = int(v)
    setattr(cfg, k, v)

def f2u(x): return struct.unpack("<I", struct.pack("<f", x))[0]

S_X, S_W, S_O = 12, 16, 20
S_WAVE, S_CG, S_BLK, S_B, S_PAR = 24, 25, 26, 27, 28
S_T0, S_T1, S_T2 = 29, 30, 31
S_C1, S_C2, S_CL = 32, 33, 34
S_XSOFF, S_OSOFF = 35, 36
S_M0X = 38
V_XOFF = 1
V_WOFF = 5
V_XH = 9
V_XA = 13
V_WA = 17
V_OOFF = 21
V_OW = 22
V_OR = 23
V_OG = 24
V_S = 25
V_P, V_Q, V_R = 32, 48, 64
V_E = [80, 96]
V_T = 112
V_OUT = [124, 124]
V_ORD = 28
V_XB = [128, 192]
NV = 256
OBUF = 65536

def vr(b, n): return f"v[{b}:{b+n-1}]"
def ar(b, n): return f"a[{b}:{b+n-1}]"
def sr(b, n): return f"s[{b}:{b+n-1}]"

class E:
    def __init__(self):
        self.lines = []; self.vm = []; self.lg = []; self.ninstr = 0; self.nstamp = 0
        self.lg_done = set(); self.safe = set(); self.lg_all = set()
    def raw(self, s): self.lines.append(s)
    def i(self, s):
        self.lines.append("    " + s); self.ninstr += 1
    def vmem(self, s, tag):
        self.i(s); self.vm.append(tag)
        assert len(self.vm) <= 63, "vmcnt overflow"
    def lds(self, s, tag):
        if len(self.lg) >= 15:
            self.wait(lg=[self.lg[0]])
        self.i(s); self.lg.append(tag); self.lg_all.add(tag)
    def _need(self, lst, tags):
        idx = -1
        for k, t in enumerate(lst):
            if t in tags: idx = k
        return idx
    def wait(self, vm=None, lg=None):
        parts = []
        if vm:
            idx = self._need(self.vm, vm)
            if idx >= 0:
                parts.append(f"vmcnt({len(self.vm)-1-idx})"); self.vm = self.vm[idx+1:]
        if lg:
            idx = self._need(self.lg, lg)
            if idx >= 0:
                parts.append(f"lgkmcnt({len(self.lg)-1-idx})")
                self.lg = self.lg[idx+1:]
        if parts: self.i("s_waitcnt " + " ".join(parts)); return True
        return False
    def pending_lg(self, tags): return self._need(self.lg, tags) >= 0
    def wait_lg_all(self):
        if self.lg:
            self.lg = []; self.i("s_waitcnt lgkmcnt(0)")
    def barrier(self):
        self.safe |= (self.lg_all - set(self.lg))
        self.i("s_barrier")
    def stamp(self, name):
        if not cfg.stamps: return
        k = self.nstamp; self.nstamp += 1
        assert 44 + 4*k + 3 < 96
        self.wait_lg_all()
        self.i(f"s_memtime s[{44+4*k}:{45+4*k}]")
        self.i(f"s_memrealtime s[{46+4*k}:{47+4*k}]")
        self.i("s_waitcnt lgkmcnt(0)")

e = E()

def xslot(m): return (m + 2) & 3
def wslot(q): return q % 6

def issue_x(m):
    soff = 1024 if m == -1 else max(m, 0)*1024
    return [("salu", f"s_add_u32 m0, s{S_M0X}, {xslot(m)*16384}"),
            ("salu", f"s_mov_b32 s{S_XSOFF}, {soff}")] + \
           [("vmem", f"buffer_load_dwordx4 v{(V_XH if m < 0 else V_XOFF)+k}, {sr(S_X,4)}, s{S_XSOFF} offen offset:{1024*k} {cfg.xflags} lds", f"X{m}") for k in range(4)]

def issue_w(q):
    return [("salu", f"s_add_u32 m0, s{S_M0X}, {65536 + wslot(q)*16384}"),
            ("salu", f"s_mov_b32 s{S_XSOFF}, {q*65536}")] + \
           [("vmem", f"buffer_load_dwordx4 v{V_WOFF+k}, {sr(S_W,4)}, s{S_XSOFF} offen offset:{1024*k} {cfg.wflags} lds", f"W{q}") for k in range(4)]

def emit(item):
    kind = item[0]
    if kind == "vmem": e.vmem(item[1], item[2])
    elif kind == "lds": e.lds(item[1], item[2])
    elif kind == "waitvm": e.wait(vm=item[1])
    elif kind == "waitlg": e.wait(lg=item[1])
    elif kind == "bar": e.barrier()
    else: e.i(item[1])

def emit_all(items):
    for it in items: emit(it)

def xread(m, j, tb, dst):
    off = xslot(m)*16384 + tb*8192 + 256*(j >> 2)
    return ("lds", f"ds_read_b128 {vr(dst, 4)}, v{V_XA + (j & 3)} offset:{off}", f"x{m}_{j}_{tb}")

def areg(tap, j, blk): return ((tap*8 + j)*2 + blk)*4

def wreads(q):
    tap, qq = q >> 2, q & 3
    slot = wslot(q)
    out = []
    for jp in range(2):
        for blk in range(2):
            for s in range(2):
                base = V_WA + blk + (2 if slot >= 4 else 0)
                off = (slot & 3)*16384 + jp*8192 + s*256
                a = areg(tap, 2*qq + jp, blk) + 2*s
                out.append(("lds", f"ds_read_b64_tr_b16 {ar(a,2)}, v{base} offset:{off}", f"w{q}_{jp}_{blk}_{s}"))
    return out

def accreg(base, blk, tb): return base + (blk*2 + tb)*4

def mf(D, tap, j, blk, B, C):
    Cs = "0" if C is None else vr(C, 4)
    return f"v_mfma_f32_16x16x32_bf16 {vr(D,4)}, {ar(areg(tap, j, blk),4)}, {vr(B,4)}, {Cs}"

def epilogue_ops(m, direct, flags):
    ops = []
    Eb = V_E[m & 1]; O = V_OUT[m & 1]
    n = 0
    for tb in range(2):
        for pr in range(2):
            t = V_T + (6 if n & 1 else 0); n += 1
            f0 = accreg(Eb, 0, tb) + 2*pr; g0 = accreg(Eb, 1, tb) + 2*pr
            z0, z1, y0, y1, p0, p1 = t, t+1, t+2, t+3, t+4, t+5
            ops += [
                (1, "valu", f"v_mul_f32 v{z0}, s{S_C1}, v{f0}"),
                (1, "valu", f"v_mul_f32 v{z1}, s{S_C1}, v{f0+1}"),
                (1, "valu", f"v_mul_f32 v{y0}, s{S_C2}, v{g0}"),
                (1, "valu", f"v_mul_f32 v{y1}, s{S_C2}, v{g0+1}"),
                (1, "valu", f"v_min_f32 v{z0}, s{S_CL}, v{z0}"),
                (1, "valu", f"v_min_f32 v{z1}, s{S_CL}, v{z1}"),
                (2, "valu", f"v_exp_f32 v{y0}, v{y0}"),
                (2, "valu", f"v_exp_f32 v{y1}, v{y1}"),
                (2, "valu", f"v_exp_f32 v{z0}, v{z0}"),
                (2, "valu", f"v_exp_f32 v{z1}, v{z1}"),
                (1, "valu", f"v_add_f32 v{p0}, 1.0, v{z0}"),
                (1, "valu", f"v_add_f32 v{p1}, 1.0, v{z1}"),
                (1, "valu", f"v_fmac_f32 v{p0}, v{p0}, v{y0}"),
                (1, "valu", f"v_fmac_f32 v{p1}, v{p1}, v{y1}"),
                (2, "valu", f"v_rcp_f32 v{p0}, v{p0}"),
                (2, "valu", f"v_rcp_f32 v{p1}, v{p1}"),
                (1, "valu", f"v_fma_f32 v{z0}, -v{z0}, v{p0}, v{p0}"),
                (1, "valu", f"v_fma_f32 v{z1}, -v{z1}, v{p1}, v{p1}"),
                (1, "valu", f"v_cvt_pk_bf16_f32 v{O + 2*tb + pr}, v{z0}, v{z1}"),
            ]
    ops.append((1, "salu", f"s_mov_b32 s{S_OSOFF}, {m*1024}" if direct else "s_nop 0"))
    ops.append((1, "valu", f"v_permlane32_swap_b32 v{O}, v{O+2}"))
    ops.append((1, "valu", f"v_permlane32_swap_b32 v{O+1}, v{O+3}"))
    if direct:
        ops.append((1, "salu", "s_nop 0"))
        ops.append((2, "vmem", f"buffer_store_dwordx4 {vr(O,4)}, v{V_OOFF}, {sr(S_O,4)}, s{S_OSOFF} offen {flags}", f"S{m}"))
    else:
        ops.append((1, "lds", f"ds_write_b128 v{V_OW}, {vr(O,4)} offset:{(m & 1)*4096}", f"ow{m}"))
    return ops

def readback_ops(m):
    return [("lds", f"ds_read_b128 {vr(V_ORD,4)}, v{V_OR} offset:{(m & 1)*4096}", f"or{m}")], \
           [("salu", f"s_mov_b32 s{S_OSOFF}, {m*1024}"),
            ("waitlg", [f"or{m}"]),
            ("vmem", f"buffer_store_dwordx4 {vr(V_ORD,4)}, v{V_OG}, {sr(S_O,4)}, s{S_OSOFF} offen {cfg.store_flags}", f"S{m}")]

COST = {"salu": 1, "vmem": 2, "lds": 1, "waitvm": 1, "waitlg": 1, "bar": 1, "valu": 1}

def ring_reg(m, j, tb):
    idx = ((m - 1)*8 + j) % cfg.ring
    return V_XB[0] + 8*idx + 4*tb

def step(m, chains, epi, epi_direct, rb, force_bar=False):
    nch = len(chains)
    per = 4*nch
    ng = 8*per
    seq = []
    for j in range(8):
        if cfg.order == "A":
            grp = [(ch, blk, tb) for ch in chains for blk in range(2) for tb in range(2)]
        else:
            grp = [(ch, blk, tb) for tb in range(2) for ch in chains for blk in range(2)]
        seq += [(j,) + g for g in grp]
    gaps = [[] for _ in range(ng)]
    pre = [[] for _ in range(ng)]
    nxt = m + 1 <= 15
    for j in range(8):
        pre[per*j].append(("waitlg", [f"x{m}_{j}_0", f"x{m}_{j}_1"]))
        jj = j + cfg.pf
        for tb in range(2):
            g = per*j + (tb if per > 4 else tb)
            if jj < 8: gaps[g].append(xread(m, jj, tb, ring_reg(m, jj, tb)))
            elif nxt: gaps[g].append(xread(m+1, jj-8, tb, ring_reg(m+1, jj-8, tb)))
    need_bar = nxt or force_bar or rb is not None
    if need_bar:
        bg = min(cfg.bar_gap*nch//3, per*(8-cfg.pf) - 1)
        if nxt: gaps[bg].append(("waitvm", [f"X{m+1}"]))
        if rb is not None: gaps[bg].append(("waitlg", [f"ow{rb}"]))
        gaps[bg].append(("bar", "s_barrier"))
        g = bg + 1
        if rb is not None:
            rd, st = readback_ops(rb)
            gaps[g] += rd; g += 1
        if m + 3 <= 15:
            it = issue_x(m+3)
            gaps[g] += it[:2]; g += 1
            for k in range(4):
                gaps[min(g, ng-1)].append(it[2+k]); g += cfg.dma_gap
        if rb is not None:
            gg = min(max(bg + 1 + 10, g), ng-2)
            gaps[gg] += st[:2]; gaps[gg+1].append(st[2])
    if epi is not None:
        ops = epilogue_ops(epi, epi_direct, cfg.store_flags if cfg.omode == "direct" else cfg.tail_flags)
        fixed = [sum(COST[f[0]] for f in gaps[g]) + (sum(COST[f[0]] for f in pre[g+1]) if g+1 < ng else 0) for g in range(ng)]
        g0 = cfg.epi_start; g1 = ng
        total = sum(o[0] for o in ops)
        L = 2
        while sum(max(0, L - fixed[g]) for g in range(g0, g1)) < total + 4: L += 1
        cap = [max(0, L - fixed[g]) for g in range(ng)]
        avail = sum(cap[g0:g1])
        k = 0; credit = 0.0; used = 0
        rate = min(1.0, (total + 6) / avail)
        for g in range(g0, g1):
            credit += cap[g]*rate
            room = cap[g]
            while k < len(ops) and ops[k][0] <= room and ops[k][0] <= credit + 0.999:
                credit -= ops[k][0]; room -= ops[k][0]
                gaps[g].append(ops[k][1:]); k += 1
        while k < len(ops):
            gaps[g1-1].append(ops[k][1:]); k += 1
    for g, (j, ch, blk, tb) in enumerate(seq):
        tap = {"P": 2, "Q": 1, "R": 0}[ch]
        base = {"P": V_P, "Q": V_Q, "R": V_R}[ch]
        D = accreg(base, blk, tb); C = D
        if j == 0: C = {"P": accreg(V_Q, blk, tb), "Q": accreg(V_R, blk, tb), "R": None}[ch]
        if j == 7 and ch == "P": D = accreg(V_E[m & 1], blk, tb)
        emit_all(pre[g])
        e.i(mf(D, tap, j, blk, ring_reg(m, j, tb), C))
        emit_all(gaps[g])

def prologue():
    E0 = V_E[0]
    XA_, XB_ = V_XB[0], V_XB[1]
    def frag(buf, j, tb): return buf + 8*j + 4*tb
    items = [("X", -2), ("W", 0), ("W", 1), ("W", 2), ("W", 3), ("X", -1), ("W", 4), ("W", 5), ("W", 6), ("W", 7),
             ("X", 0), ("W", 8), ("W", 9), ("W", 10), ("W", 11), ("X", 1), ("X", 2), ("X", 3)]
    def name(it): return f"{it[0]}{it[1]}"
    xbuf = {-2: XB_, -1: XA_, 0: XB_}
    def wtags(q): return [f"w{q}_{jp}_{blk}_{s}" for jp in range(2) for blk in range(2) for s in range(2)]
    def xtags(m): return [f"x{m}_{j}_{tb}" for j in range(8) for tb in range(2)]
    slot_free = {}
    for q in range(6, 12): slot_free[f"W{q}"] = wtags(q-6)
    slot_free["X2"] = xtags(-2); slot_free["X3"] = xtags(-1)
    started = set()
    def product(q, m, acc):
        tap, qq = q >> 2, q & 3
        out = []
        for jp in range(2):
            j = 2*qq + jp
            for blk in range(2):
                for tb in range(2):
                    D = accreg(acc, blk, tb)
                    first = (acc, blk, tb) not in started
                    started.add((acc, blk, tb))
                    tags = [f"w{q}_{jp}_{blk}_0", f"w{q}_{jp}_{blk}_1", f"x{m}_{j}_{tb}"]
                    out.append((mf(D, tap, j, blk, frag(xbuf[m], j, tb), None if first else D), tags))
        return out
    phases = []
    def xq(m, qq): return [xread(m, j, tb, frag(xbuf[m], j, tb)) for j in (2*qq, 2*qq+1) for tb in range(2)]
    def xall(m): return [r for qq in range(4) for r in xq(m, qq)]
    phases.append((["X-2", "W0"], wreads(0)[:4] + xq(-2, 0)[:2] + wreads(0)[4:] + xq(-2, 0)[2:], [(0, -2, E0)]))
    for q in (1, 2, 3):
        phases.append(([f"W{q}"], wreads(q)[:4] + xq(-2, q)[:2] + wreads(q)[4:] + xq(-2, q)[2:], [(q, -2, E0)]))
    phases.append((["X-1"], xall(-1), [(q, -1, V_Q) for q in range(4)]))
    for q in range(4, 8): phases.append(([f"W{q}"], wreads(q), [(q, -1, E0)]))
    phases.append((["X0"], xall(0), [(q, 0, V_R) for q in range(4)] + [(q, 0, V_Q) for q in range(4, 8)]))
    for q in range(8, 12): phases.append(([f"W{q}"], wreads(q), [(q, 0, E0)]))
    ringreads = [xread(1, j, tb, ring_reg(1, j, tb)) for j in range(cfg.pf) for tb in range(2)]
    phases.append((["X1"], ringreads, []))
    dma = deque()
    for it in items:
        lst = issue_x(it[1]) if it[0] == "X" else issue_w(it[1])
        for k, x in enumerate(lst): dma.append((name(it), k, x))
    t = 0; last_mf = -100; ta = 0
    arrival = {}; rdy = {}
    reads = deque(); mq = deque()
    pi = 0
    issued_addr2 = False
    def tick(n=4):
        nonlocal t
        t += n
    def dma_ok():
        if not dma: return False
        nm = dma[0][0]
        return all(tg in e.safe for tg in slot_free.get(nm, []))
    def do_dma():
        nonlocal t, ta
        nm, k, x = dma.popleft()
        if x[0] == "vmem":
            t = max(t, ta - cfg.pace*cfg.ahead)
            ta = max(ta, t) + cfg.pace
            arrival[nm] = ta + cfg.lat
        emit(x); tick()
    def dma_time():
        if dma[0][2][0] != "vmem": return 0
        return ta - cfg.pace*cfg.ahead
    def phase_time():
        return max(arrival.get(n, 1 << 30) for n in phases[pi][0])
    def do_phase():
        nonlocal t, pi
        names, rds, prods = phases[pi]
        t = max(t, phase_time())
        idx = e._need(e.vm, names)
        parts = []
        if idx >= 0:
            parts.append(f"vmcnt({len(e.vm)-1-idx})"); e.vm = e.vm[idx+1:]
        if e.lg:
            parts.append("lgkmcnt(0)"); e.lg = []
        if parts: e.i("s_waitcnt " + " ".join(parts)); tick()
        e.barrier(); tick(12)
        if cfg.stamps and names[0] in ("X-2", "X-1", "X0", "X1"): e.stamp(f"phase {names}")
        for r in rds: reads.append(r)
        for p in prods:
            for x in product(*p): mq.append(x)
        pi += 1
    def do_read():
        r = reads.popleft()
        emit(r); rdy[r[2]] = t + cfg.ldslat; tick()
    def mf_ready():
        if not mq: return None
        tags = mq[0][1]
        if any(tg not in e.lg_all for tg in tags): return None
        return max(rdy.get(tg, 0) for tg in tags)
    def do_mf():
        nonlocal t, last_mf
        s, tags = mq.popleft()
        t = max(t, mf_ready_cache[0])
        if e.wait(lg=tags): tick()
        t = max(t, last_mf + 16)
        last_mf = t
        e.i(s); t += 8
    mf_ready_cache = [0]
    ndma = 0
    while dma or reads or mq or pi < len(phases):
        r = mf_ready(); mf_ready_cache[0] = r or 0
        in_shadow = t < last_mf + 16
        if not issued_addr2 and (not dma or dma[0][0] == "W2"):
            gen_addr2(); t += 150; issued_addr2 = True; continue
        if reads and (in_shadow or r is None or r > t):
            do_read(); continue
        if dma and dma_ok() and dma_time() <= t and (in_shadow or r is None or r > t or dma[0][2][0] == "vmem"):
            do_dma(); continue
        if pi < len(phases) and not reads and issued_addr2 and phase_time() <= t:
            do_phase(); continue
        if r is not None and r <= t + 8:
            do_mf(); continue
        cand = []
        if r is not None: cand.append((r, 0, do_mf))
        if dma and dma_ok(): cand.append((dma_time(), 1, do_dma))
        if pi < len(phases) and not reads and issued_addr2 and phase_time() < (1 << 30): cand.append((phase_time(), 2, do_phase))
        if reads: cand.append((t, -1, do_read))
        assert cand, f"prologue deadlock t={t} pi={pi} dma={dma[0] if dma else None}"
        cand.sort(key=lambda c: (c[0], c[1]))
        cand[0][2]()
    return t

def gen_head():
    e.raw(f"; @launch grid=(256,1,1) block=(256,1,1) lds=163840")
    e.raw('.amdgcn_target "amdgcn-amd-amdhsa--gfx950"')
    e.raw(".text")
    e.raw(f".globl {KNAME}")
    e.raw(".p2align 8")
    e.raw(f".type {KNAME},@function")
    e.raw(f"{KNAME}:")
    e.i("s_cmp_ge_u32 s2, 256")
    e.i("s_cbranch_scc1 L_end")
    e.i(f"s_load_dwordx2 s[{S_X}:{S_X+1}], s[0:1], 0")
    e.i(f"s_load_dwordx2 s[{S_W}:{S_W+1}], s[0:1], 8")
    e.i(f"s_load_dwordx2 s[{S_O}:{S_O+1}], s[0:1], 16")
    if cfg.stamps:
        e.i("s_load_dwordx2 s[42:43], s[0:1], 32")
        e.i("s_memtime s[100:101]")
        e.i("s_memrealtime s[96:97]")
    e.i("v_lshrrev_b32 v1, 6, v0")
    e.i("v_and_b32 v0, 63, v0")
    e.i(f"v_readfirstlane_b32 s{S_WAVE}, v1")
    e.i(f"s_and_b32 s{S_T0}, s2, 7")
    e.i(f"s_lshr_b32 s{S_T1}, s2, 3")
    e.i(f"s_and_b32 s{S_CG}, s{S_T1}, 3")
    e.i(f"s_lshr_b32 s{S_T1}, s{S_T1}, 2")
    e.i(f"s_lshl_b32 s{S_T0}, s{S_T0}, 3")
    e.i(f"s_add_u32 s{S_T0}, s{S_T0}, s{S_T1}")
    e.i(f"s_and_b32 s{S_BLK}, s{S_T0}, 15")
    e.i(f"s_lshr_b32 s{S_T1}, s{S_T0}, 4")
    e.i(f"s_and_b32 s{S_PAR}, s{S_T1}, 1")
    e.i(f"s_lshr_b32 s{S_B}, s{S_T1}, 1")
    e.i(f"s_mul_i32 s{S_T0}, s{S_B}, 16000")
    e.i(f"s_lshl_b32 s{S_T1}, s{S_BLK}, 10")
    e.i(f"s_add_u32 s{S_T0}, s{S_T0}, s{S_T1}")
    e.i(f"s_add_u32 s{S_T0}, s{S_T0}, s{S_PAR}")
    e.i(f"s_lshl_b32 s{S_T0}, s{S_T0}, 9")
    e.i(f"s_lshl_b32 s{S_M0X}, s{S_WAVE}, 12")
    s0, s1, s2_, s3 = V_S, V_S+1, V_S+2, V_S+3
    e.i(f"v_lshrrev_b32 v{s0}, 5, v0")
    e.i(f"v_and_b32 v{s1}, 31, v0")
    e.i(f"s_lshl_b32 s{S_T1}, s{S_WAVE}, 3")
    e.i(f"v_add_u32 v{s0}, s{S_T1}, v{s0}")
    e.i(f"s_cmp_eq_u32 s{S_BLK}, 15")
    e.i(f"s_cselect_b32 s{S_T2}, 20, 32")
    for k in range(4):
        e.i(f"v_add_u32 v{s2_}, {2*k}, v{s0}")
        e.i(f"v_and_b32 v{s3}, 15, v{s2_}")
        e.i(f"v_xor_b32 v{s3}, v{s3}, v{s1}")
        e.i(f"v_lshlrev_b32 v{s3}, 4, v{s3}")
        e.i(f"v_lshl_add_u32 v{s3}, v{s2_}, 14, v{s3}")
        e.i(f"v_add_u32 v{s3}, s{S_T0}, v{s3}")
        if k: e.i(f"v_subrev_u32 v{s3}, {1024*k}, v{s3}")
        e.i(f"v_cmp_gt_u32 vcc, s{S_T2}, v{s2_}")
        e.i(f"v_mov_b32 v{V_XOFF+k}, 0x80000000")
        e.i(f"s_nop 0")
        e.i(f"v_cndmask_b32 v{V_XOFF+k}, v{V_XOFF+k}, v{s3}, vcc")
    for k in range(4):
        e.i(f"v_subrev_u32 v{V_XH+k}, 2048, v{V_XOFF+k}")
    e.i(f"s_or_b32 s{S_T1}, s{S_BLK}, s{S_WAVE}")
    e.i(f"s_cmp_eq_u32 s{S_T1}, 0")
    e.i(f"s_cselect_b32 s{S_T1}, 32, 0")
    e.i(f"v_cmp_gt_u32 vcc, s{S_T1}, v0")
    e.i(f"v_mov_b32 v{s0}, 0x80000000")
    e.i(f"s_nop 0")
    e.i(f"v_cndmask_b32 v{V_XH}, v{V_XH}, v{s0}, vcc")
    e.i(f"v_lshrrev_b32 v{s0}, 4, v0")
    e.i(f"v_lshlrev_b32 v{s0}, 12, v{s0}")
    e.i(f"s_lshl_b32 s{S_T1}, s{S_WAVE}, 14")
    e.i(f"s_lshl_b32 s{S_T2}, s{S_CG}, 7")
    e.i(f"s_add_u32 s{S_T1}, s{S_T1}, s{S_T2}")
    e.i(f"v_add_u32 v{s0}, s{S_T1}, v{s0}")
    e.i(f"v_and_b32 v{s1}, 1, v0")
    e.i(f"v_lshl_add_u32 v{s0}, v{s1}, 4, v{s0}")
    e.i(f"v_bfe_u32 v{s1}, v0, 1, 3")
    e.i(f"v_lshrrev_b32 v{s2_}, 5, v0")
    e.i(f"v_lshlrev_b32 v{s2_}, 2, v{s2_}")
    e.i(f"v_xor_b32 v{s1}, v{s1}, v{s2_}")
    for k in range(4):
        e.i(f"v_xor_b32 v{s2_}, {k}, v{s1}")
        e.i(f"v_and_b32 v{s3}, 3, v{s2_}")
        e.i(f"v_lshl_add_u32 v{V_WOFF+k}, v{s3}, 5, v{s0}")
        e.i(f"v_lshrrev_b32 v{s3}, 2, v{s2_}")
        e.i(f"v_lshl_add_u32 v{V_WOFF+k}, v{s3}, 9, v{V_WOFF+k}")

def gen_addr2():
    s0, s1, s2_, s3 = V_S, V_S+1, V_S+2, V_S+3
    e.i(f"v_and_b32 v{s0}, 15, v0")
    e.i(f"v_lshrrev_b32 v{s1}, 4, v0")
    e.i(f"v_xor_b32 v{s2_}, v{s0}, v{s1}")
    e.i(f"v_lshlrev_b32 v{s2_}, 4, v{s2_}")
    e.i(f"v_lshl_add_u32 v{V_XA}, v{s0}, 9, v{s2_}")
    for jj in range(1, 4):
        e.i(f"v_xor_b32 v{V_XA+jj}, {64*jj}, v{V_XA}")
    e.i(f"v_bfe_u32 v{s0}, v0, 2, 2")
    e.i(f"v_bfe_u32 v{s1}, v0, 4, 1")
    e.i(f"v_lshlrev_b32 v{s2_}, 2, v{s1}")
    e.i(f"v_xor_b32 v{s2_}, s{S_WAVE}, v{s2_}")
    e.i(f"v_xor_b32 v{s2_}, v{s2_}, v{s0}")
    e.i(f"v_lshlrev_b32 v{s2_}, 5, v{s2_}")
    e.i(f"v_lshl_add_u32 v{s2_}, v{s0}, 10, v{s2_}")
    e.i(f"v_lshl_add_u32 v{s2_}, v{s1}, 9, v{s2_}")
    e.i(f"v_lshrrev_b32 v{s0}, 5, v0")
    e.i(f"v_lshl_add_u32 v{s2_}, v{s0}, 12, v{s2_}")
    e.i(f"v_and_b32 v{s0}, 1, v0")
    e.i(f"v_lshl_add_u32 v{s2_}, v{s0}, 4, v{s2_}")
    e.i(f"v_and_b32 v{s0}, 2, v0")
    e.i(f"v_lshl_add_u32 v{s2_}, v{s0}, 2, v{s2_}")
    e.i(f"v_add_u32 v{V_WA}, 0x10000, v{s2_}")
    e.i(f"v_xor_b32 v{V_WA+1}, 128, v{V_WA}")
    e.i(f"v_add_u32 v{V_WA+2}, 0x10000, v{V_WA}")
    e.i(f"v_add_u32 v{V_WA+3}, 0x10000, v{V_WA+1}")
    e.i(f"v_lshrrev_b32 v{s0}, 5, v0")
    e.i(f"v_and_b32 v{s1}, 15, v0")
    e.i(f"v_lshl_add_u32 v{s0}, v{s0}, 4, v{s1}")
    e.i(f"v_bfe_u32 v{s1}, v0, 4, 1")
    e.i(f"s_lshl_b32 s{S_T1}, s{S_CG}, 7")
    e.i(f"s_add_u32 s{S_T1}, s{S_T1}, s{S_T0}")
    e.i(f"s_lshl_b32 s3, s{S_WAVE}, 5")
    e.i(f"s_add_u32 s3, s3, s{S_T1}")
    e.i(f"v_lshlrev_b32 v{s2_}, 14, v{s0}")
    e.i(f"v_lshl_add_u32 v{s2_}, v{s1}, 4, v{s2_}")
    e.i(f"v_add_u32 v{s2_}, s3, v{s2_}")
    e.i(f"s_cmp_eq_u32 s{S_BLK}, 15")
    e.i(f"s_cselect_b32 s{S_T2}, 20, 32")
    e.i(f"v_cmp_gt_u32 vcc, s{S_T2}, v{s0}")
    e.i(f"v_mov_b32 v{V_OOFF}, 0x80000000")
    e.i(f"s_nop 0")
    e.i(f"v_cndmask_b32 v{V_OOFF}, v{V_OOFF}, v{s2_}, vcc")
    if cfg.omode == "lds":
        e.i(f"s_lshl_b32 s3, s{S_WAVE}, 1")
        e.i(f"v_add_u32 v{s1}, s3, v{s1}")
        e.i(f"v_bfe_u32 v{s2_}, v{s0}, 1, 3")
        e.i(f"v_xor_b32 v{s1}, v{s1}, v{s2_}")
        e.i(f"v_lshlrev_b32 v{s1}, 4, v{s1}")
        e.i(f"v_lshl_add_u32 v{s1}, v{s0}, 7, v{s1}")
        e.i(f"v_add_u32 v{V_OW}, {OBUF}, v{s1}")
        e.i(f"s_lshl_b32 s3, s{S_WAVE}, 10")
        e.i(f"s_add_u32 s3, s3, {OBUF}")
        e.i(f"v_lshlrev_b32 v{s1}, 4, v0")
        e.i(f"v_add_u32 v{V_OR}, s3, v{s1}")
        e.i(f"s_lshl_b32 s3, s{S_WAVE}, 3")
        e.i(f"v_lshrrev_b32 v{s0}, 3, v0")
        e.i(f"v_add_u32 v{s0}, s3, v{s0}")
        e.i(f"v_bfe_u32 v{s1}, v{s0}, 1, 3")
        e.i(f"v_and_b32 v{s2_}, 7, v0")
        e.i(f"v_xor_b32 v{s1}, v{s1}, v{s2_}")
        e.i(f"v_lshlrev_b32 v{s1}, 4, v{s1}")
        e.i(f"v_lshl_add_u32 v{s1}, v{s0}, 14, v{s1}")
        e.i(f"v_add_u32 v{s1}, s{S_T1}, v{s1}")
        e.i(f"v_cmp_gt_u32 vcc, s{S_T2}, v{s0}")
        e.i(f"v_mov_b32 v{V_OG}, 0x80000000")
        e.i(f"s_nop 0")
        e.i(f"v_cndmask_b32 v{V_OG}, v{V_OG}, v{s1}, vcc")
    e.i(f"s_mov_b32 s{S_C1}, 0x{f2u(-2.0*math.log2(math.e)):08x}")
    e.i(f"s_mov_b32 s{S_C2}, 0x{f2u(-math.log2(math.e)):08x}")
    e.i(f"s_mov_b32 s{S_CL}, 0x{f2u(32.0):08x}")

def srds_const():
    for (S, nbytes) in ((S_X, 16384000), (S_W, 786432), (S_O, 16384000)):
        e.i(f"s_mov_b32 s{S+2}, {nbytes}")
        e.i(f"s_mov_b32 s{S+3}, 0x20000")
def srds():
    for S in (S_X, S_W, S_O):
        e.i(f"s_and_b32 s{S+1}, s{S+1}, 0xffff")

def main():
    gen_head()
    srds_const()
    e.i("s_waitcnt lgkmcnt(0)")
    srds()
    e.stamp("start-issue")
    prologue()
    e.stamp("enter steady")
    lds = cfg.omode == "lds"
    for m in range(1, 14):
        step(m, ["P", "Q", "R"], m-1, not lds, (m-2 if lds and m >= 2 else None))
    e.stamp("steady done")
    step(14, ["P", "Q"], 13, not lds, 12 if lds else None)
    if lds:
        step(15, ["P"], 14, True, 13)
    else:
        step(15, ["P"], 14, True, None)
    e.stamp("mfma done")
    e.i("s_nop 7")
    for o in epilogue_ops(15, True, cfg.store_flags if not lds else cfg.tail_flags): emit(o[1:])
    if cfg.stamps:
        e.i("s_waitcnt vmcnt(0) lgkmcnt(0)")
        e.stamp("end")
        e.i("s_memrealtime s[98:99]")
        e.i("s_waitcnt lgkmcnt(0)")
        e.i(f"s_lshl_b32 s3, s2, 2")
        e.i(f"s_add_u32 s3, s3, s{S_WAVE}")
        e.i(f"s_lshl_b32 s3, s3, 8")
        e.i(f"s_add_u32 s42, s42, s3")
        e.i(f"s_addc_u32 s43, s43, 0")
        e.i(f"v_mov_b32 v0, 0")
        def st(a, off):
            e.i(f"v_mov_b32 v2, s{a}"); e.i(f"v_mov_b32 v3, s{a+1}")
            e.i(f"global_store_dwordx2 v0, v[2:3], s[42:43] offset:{off}"); e.i("s_nop 1")
        st(100, 0)
        for k in range(e.nstamp):
            st(44+4*k, 8*(k+1)); st(46+4*k, 8*(k+1)+112)
        st(96, 232); st(98, 240)
        e.i("s_getreg_b32 s3, hwreg(HW_REG_XCC_ID)")
        e.i("v_mov_b32 v2, s3")
        e.i("s_getreg_b32 s3, hwreg(HW_REG_HW_ID)")
        e.i("v_mov_b32 v3, s3")
        e.i(f"global_store_dwordx2 v0, v[2:3], s[42:43] offset:248")
    e.raw("L_end:")
    e.i("s_endpgm")
    e.raw('.section .rodata,"a"')
    e.raw(".p2align 6")
    e.raw(f".amdhsa_kernel {KNAME}")
    e.raw(f"  .amdhsa_next_free_vgpr {((NV+3)//4)*4 + 192}")
    e.raw("  .amdhsa_next_free_sgpr 102")
    e.raw(f"  .amdhsa_accum_offset {((NV+3)//4)*4}")
    e.raw("  .amdhsa_group_segment_fixed_size 0")
    e.raw("  .amdhsa_kernarg_size 40")
    e.raw("  .amdhsa_user_sgpr_count 2")
    e.raw("  .amdhsa_user_sgpr_kernarg_segment_ptr 1")
    e.raw("  .amdhsa_system_sgpr_workgroup_id_x 1")
    e.raw("  .amdhsa_float_denorm_mode_32 3")
    e.raw(".end_amdhsa_kernel")
    hdr = open("standalone__autoregressive_conv_wavernn__speech.s.ref").read().split("; Override")[0]
    open(sys.argv[1], "w").write(hdr + "\n".join(e.lines) + "\n")

main()
```

```python
import sys, math, struct
from collections import deque

KNAME = "standalone__autoregressive_conv_wavernn__speech_kernel"

class Cfg:
    stamps = False
    store_flags = ""
    tail_flags = ""
    xflags = ""
    wflags = ""
    omode = "direct"
    bar_gap = 60
    pf = 1
    ring = 4
    order = "A"
    lat = 800
    ahead = 1
    pace = 64
    ldslat = 140
    items = "simple"
    epi_start = 2
    dma_gap = 2
    tail_split = 0
    l2pf = 0
    noepi = 0
    nobar = 0
    nodma = 0
    cap = 2
    dump = 0
    loop = 1
    align = 0

cfg = Cfg()
for a in sys.argv[2:]:
    k, v = a.split("=", 1)
    old = getattr(cfg, k)
    if isinstance(old, bool): v = v in ("1", "true", "True")
    elif isinstance(old, int): v = int(v)
    setattr(cfg, k, v)

def f2u(x): return struct.unpack("<I", struct.pack("<f", x))[0]

S_X, S_W, S_O = 12, 16, 20
S_WAVE, S_CG, S_BLK, S_B, S_PAR = 24, 25, 26, 27, 28
S_T0, S_T1, S_T2 = 29, 30, 31
S_C1, S_C2, S_CL = 32, 33, 34
S_XSOFF, S_OSOFF = 35, 36
S_M0X = 38
S_M0H = 39
S_WSOFF = 37
V_XOFF = 1
V_WOFF = 5
V_XH = 9
V_XA = 13
V_WA = 17
V_OOFF = 21
V_OW = 22
V_OR = 23
V_OG = 24
V_OG2 = 10
V_OOB = 112
S_TSOFF = 40
V_S = 25
V_P, V_Q, V_R = 32, 48, 64
V_E = [80, 96]
V_T = 112
V_OUT = [124, 124]
V_ORD = 28
V_XB = [128, 192]
NV = 256
OBUF = 65536

def vr(b, n): return f"v[{b}:{b+n-1}]"
def ar(b, n): return f"a[{b}:{b+n-1}]"
def sr(b, n): return f"s[{b}:{b+n-1}]"

class E:
    def __init__(self):
        self.lines = []; self.vm = []; self.lg = []; self.ninstr = 0; self.nstamp = 0
        self.lg_done = set(); self.safe = set(); self.lg_all = set()
    def raw(self, s): self.lines.append(s)
    def i(self, s):
        self.lines.append("    " + s); self.ninstr += 1
    def vmem(self, s, tag):
        self.i(s); self.vm.append(tag)
        assert len(self.vm) <= 63, "vmcnt overflow"
    def lds(self, s, tag):
        if len(self.lg) >= 15:
            self.wait(lg=[self.lg[0]])
        self.i(s); self.lg.append(tag); self.lg_all.add(tag)
    def _need(self, lst, tags):
        idx = -1
        for k, t in enumerate(lst):
            if t in tags: idx = k
        return idx
    def wait(self, vm=None, lg=None):
        parts = []
        if vm:
            idx = self._need(self.vm, vm)
            if idx >= 0:
                parts.append(f"vmcnt({len(self.vm)-1-idx})"); self.vm = self.vm[idx+1:]
        if lg:
            idx = self._need(self.lg, lg)
            if idx >= 0:
                parts.append(f"lgkmcnt({len(self.lg)-1-idx})")
                self.lg = self.lg[idx+1:]
        if parts: self.i("s_waitcnt " + " ".join(parts)); return True
        return False
    def pending_lg(self, tags): return self._need(self.lg, tags) >= 0
    def wait_lg_all(self):
        if self.lg:
            self.lg = []; self.i("s_waitcnt lgkmcnt(0)")
    def barrier(self):
        self.safe |= (self.lg_all - set(self.lg))
        self.i("s_barrier")
    def stamp(self, name):
        if not cfg.stamps: return
        k = self.nstamp; self.nstamp += 1
        assert 44 + 4*k + 3 < 96
        self.wait_lg_all()
        self.i(f"s_memtime s[{44+4*k}:{45+4*k}]")
        self.i(f"s_memrealtime s[{46+4*k}:{47+4*k}]")
        self.i("s_waitcnt lgkmcnt(0)")

e = E()

def xslot(m): return (m + 2) & 3
def wslot(q): return q % 6

def issue_x(m):
    soff = 1024 if m == -1 else max(m, 0)*1024
    return [("salu", f"s_add_u32 m0, s{S_M0X}, {xslot(m)*16384}"),
            ("salu", f"s_mov_b32 s{S_XSOFF}, {soff}")] + \
           [("vmem", f"buffer_load_dwordx4 v{(V_XH if m < 0 else V_XOFF)+k}, {sr(S_X,4)}, s{S_XSOFF} offen offset:{1024*k} {cfg.xflags} lds", f"X{m}") for k in range(4)]

def issue_x_loop(m):
    first = ("salu", f"s_mov_b32 m0, s{S_M0H}") if m & 1 else ("salu", f"s_add_u32 m0, s{S_M0H}, 16384")
    it = [first, ("salu", f"s_add_u32 s{S_XSOFF}, s{S_XSOFF}, 1024")] + \
         [("vmem", f"buffer_load_dwordx4 v{V_XOFF+k}, {sr(S_X,4)}, s{S_XSOFF} offen offset:{1024*k} {cfg.xflags} lds", f"X{m+3}") for k in range(4)]
    if not (m & 1): it.append(("salu", f"s_xor_b32 s{S_M0H}, s{S_M0H}, 32768"))
    return it

def issue_w(q):
    return [("salu", f"s_add_u32 m0, s{S_M0X}, {65536 + wslot(q)*16384}"),
            ("salu", f"s_mov_b32 s{S_WSOFF}, {q*65536}")] + \
           [("vmem", f"buffer_load_dwordx4 v{V_WOFF+k}, {sr(S_W,4)}, s{S_WSOFF} offen offset:{1024*k} {cfg.wflags} lds", f"W{q}") for k in range(4)]

def emit(item):
    kind = item[0]
    if kind == "vmem": e.vmem(item[1], item[2])
    elif kind == "lds": e.lds(item[1], item[2])
    elif kind == "waitvm": e.wait(vm=item[1])
    elif kind == "waitlg": e.wait(lg=item[1])
    elif kind == "bar": e.barrier()
    else: e.i(item[1])

def emit_all(items):
    for it in items: emit(it)

def xread(m, j, tb, dst, rel=False):
    off = (xslot(m) & 1 if rel else xslot(m))*16384 + tb*8192 + 256*(j >> 2)
    return ("lds", f"ds_read_b128 {vr(dst, 4)}, v{V_XA + (j & 3)} offset:{off}", f"x{m}_{j}_{tb}")

def areg(tap, j, blk): return ((tap*8 + j)*2 + blk)*4

def wreads(q):
    tap, qq = q >> 2, q & 3
    slot = wslot(q)
    out = []
    for jp in range(2):
        for blk in range(2):
            for s in range(2):
                base = V_WA + blk + (2 if slot >= 4 else 0)
                off = (slot & 3)*16384 + jp*8192 + s*256
                a = areg(tap, 2*qq + jp, blk) + 2*s
                out.append(("lds", f"ds_read_b64_tr_b16 {ar(a,2)}, v{base} offset:{off}", f"w{q}_{jp}_{blk}_{s}"))
    return out

def accreg(base, blk, tb): return base + (blk*2 + tb)*4

def mf(D, tap, j, blk, B, C):
    Cs = "0" if C is None else vr(C, 4)
    return f"v_mfma_f32_16x16x32_bf16 {vr(D,4)}, {ar(areg(tap, j, blk),4)}, {vr(B,4)}, {Cs}"

def epilogue_ops(m, direct, flags):
    ops = []
    Eb = V_E[m & 1]; O = V_OUT[m & 1]
    n = 0
    for tb in range(2):
        for pr in range(2):
            t = V_T + (6 if n & 1 else 0); n += 1
            f0 = accreg(Eb, 0, tb) + 2*pr; g0 = accreg(Eb, 1, tb) + 2*pr
            z0, z1, y0, y1, p0, p1 = t, t+1, t+2, t+3, t+4, t+5
            ops += [
                (1, "valu", f"v_mul_f32 v{z0}, s{S_C1}, v{f0}"),
                (1, "valu", f"v_mul_f32 v{z1}, s{S_C1}, v{f0+1}"),
                (1, "valu", f"v_mul_f32 v{y0}, s{S_C2}, v{g0}"),
                (1, "valu", f"v_mul_f32 v{y1}, s{S_C2}, v{g0+1}"),
                (1, "valu", f"v_min_f32 v{z0}, s{S_CL}, v{z0}"),
                (1, "valu", f"v_min_f32 v{z1}, s{S_CL}, v{z1}"),
                (2, "valu", f"v_exp_f32 v{y0}, v{y0}"),
                (2, "valu", f"v_exp_f32 v{y1}, v{y1}"),
                (2, "valu", f"v_exp_f32 v{z0}, v{z0}"),
                (2, "valu", f"v_exp_f32 v{z1}, v{z1}"),
                (1, "valu", f"v_add_f32 v{p0}, 1.0, v{z0}"),
                (1, "valu", f"v_add_f32 v{p1}, 1.0, v{z1}"),
                (1, "valu", f"v_fmac_f32 v{p0}, v{p0}, v{y0}"),
                (1, "valu", f"v_fmac_f32 v{p1}, v{p1}, v{y1}"),
                (2, "valu", f"v_rcp_f32 v{p0}, v{p0}"),
                (2, "valu", f"v_rcp_f32 v{p1}, v{p1}"),
                (1, "valu", f"v_fma_f32 v{z0}, -v{z0}, v{p0}, v{p0}"),
                (1, "valu", f"v_fma_f32 v{z1}, -v{z1}, v{p1}, v{p1}"),
                (1, "valu", f"v_cvt_pk_bf16_f32 v{O + 2*tb + pr}, v{z0}, v{z1}"),
            ]
    if not direct: ops.append((1, "salu", "s_nop 0"))
    elif cfg.loop and cfg.omode == "direct": ops.append((1, "salu", f"s_add_u32 s{S_OSOFF}, s{S_OSOFF}, 1024"))
    elif cfg.omode == "lds": ops.append((1, "salu", f"s_mov_b32 s{S_TSOFF}, {m*1024}"))
    else: ops.append((1, "salu", f"s_mov_b32 s{S_OSOFF}, {m*1024}"))
    so = S_TSOFF if cfg.omode == "lds" else S_OSOFF
    ops.append((1, "valu", f"v_permlane32_swap_b32 v{O}, v{O+2}"))
    ops.append((1, "valu", f"v_permlane32_swap_b32 v{O+1}, v{O+3}"))
    if direct:
        ops.append((1, "salu", "s_nop 0"))
        ops.append((2, "vmem", f"buffer_store_dwordx4 {vr(O,4)}, v{V_OOFF}, {sr(S_O,4)}, s{so} offen {flags}", f"S{m}"))
    else:
        ops.append((1, "lds", f"ds_write_b128 v{V_OW}, {vr(O,4)} offset:{(m & 1)*4096}", f"ow{m}"))
    return ops

def readback_ops(m):
    og = V_OG2 if (cfg.loop and m & 1) else V_OG
    st = [("salu", f"s_add_u32 s{S_OSOFF}, s{S_OSOFF}, 1024" if cfg.loop else f"s_mov_b32 s{S_OSOFF}, {m*1024}"),
          ("waitlg", [f"or{m}"]),
          ("vmem", f"buffer_store_dwordx4 {vr(V_ORD,4)}, v{og}, {sr(S_O,4)}, s{S_OSOFF} offen {cfg.store_flags}", f"S{m}")]
    if cfg.loop and m & 1: st.append(("valu", f"v_mov_b32 v{V_OG2}, v{V_OG}"))
    return [("lds", f"ds_read_b128 {vr(V_ORD,4)}, v{V_OR} offset:{(m & 1)*4096}", f"or{m}")], st

COST = {"salu": 1, "vmem": 2, "lds": 1, "waitvm": 1, "waitlg": 1, "bar": 1, "valu": 1}

def ring_reg(m, j, tb):
    idx = ((m - 1)*8 + j) % cfg.ring
    return V_XB[0] + 8*idx + 4*tb

def step(m, chains, epi, epi_direct, rb, force_bar=False):
    nch = len(chains)
    per = 4*nch
    ng = 8*per
    seq = []
    for j in range(8):
        if cfg.order == "A":
            grp = [(ch, blk, tb) for ch in chains for blk in range(2) for tb in range(2)]
        else:
            grp = [(ch, blk, tb) for tb in range(2) for ch in chains for blk in range(2)]
        seq += [(j,) + g for g in grp]
    gaps = [[] for _ in range(ng)]
    pre = [[] for _ in range(ng)]
    nxt = m + 1 <= 15
    for j in range(8):
        pre[per*j].append(("waitlg", [f"x{m}_{j}_0", f"x{m}_{j}_1"]))
        jj = j + cfg.pf
        for tb in range(2):
            g = per*j + (tb if per > 4 else tb)
            if jj < 8: gaps[g].append(xread(m, jj, tb, ring_reg(m, jj, tb), cfg.loop))
            elif nxt: gaps[g].append(xread(m+1, jj-8, tb, ring_reg(m+1, jj-8, tb), cfg.loop))
    if cfg.loop and (m & 1) and nxt:
        for jj in range(4):
            gaps[per*(jj + 5 - cfg.pf) + 2].append(("valu", f"v_xor_b32 v{V_XA+jj}, 0x8000, v{V_XA+jj}"))
    need_bar = nxt or force_bar or rb is not None
    if need_bar:
        bg = min(cfg.bar_gap*nch//3, per*(8-cfg.pf) - 1)
        if nxt: gaps[bg].append(("waitvm", [f"X{m+1}"]))
        if rb is not None: gaps[bg].append(("waitlg", [f"ow{rb}"]))
        if not cfg.nobar: gaps[bg].append(("bar", "s_barrier"))
        g = bg + 1
        if rb is not None:
            rd, st = readback_ops(rb)
            gaps[g] += rd; g += 1
        if m + 3 <= 15 and not cfg.nodma:
            it = issue_x_loop(m) if cfg.loop else issue_x(m+3)
            gaps[g] += it[:2]; g += 1
            for k in range(4):
                gaps[min(g, ng-1)].append(it[2+k]); g += cfg.dma_gap
            for x in it[6:]: gaps[min(g-1, ng-1)].append(x)
        if rb is not None:
            gg = min(max(bg + 1 + 10, g), ng-2)
            gaps[gg] += st[:2]; gaps[gg+1] += st[2:]
    if epi is not None and not cfg.noepi:
        ops = epilogue_ops(epi, epi_direct, cfg.store_flags if cfg.omode == "direct" else cfg.tail_flags)
        fixed = [sum(COST[f[0]] for f in gaps[g]) + (sum(COST[f[0]] for f in pre[g+1]) if g+1 < ng else 0) for g in range(ng)]
        g0 = cfg.epi_start; g1 = ng
        total = sum(o[0] for o in ops)
        L = cfg.cap
        while sum(max(0, L - fixed[g]) for g in range(g0, g1)) < total + 4: L += 1
        cap = [max(0, L - fixed[g]) for g in range(ng)]
        avail = sum(cap[g0:g1])
        k = 0; credit = 0.0; used = 0
        rate = min(1.0, (total + 6) / avail)
        for g in range(g0, g1):
            credit += cap[g]*rate
            room = cap[g]
            while k < len(ops) and ops[k][0] <= room and ops[k][0] <= credit + 0.999:
                credit -= ops[k][0]; room -= ops[k][0]
                gaps[g].append(ops[k][1:]); k += 1
        while k < len(ops):
            gaps[g1-1].append(ops[k][1:]); k += 1
    if cfg.dump == m:
        cst = lambda f: 2 if ("exp" in f[1] or "rcp" in f[1]) else COST[f[0]]
        print([sum(cst(f) for f in gaps[g]) + (sum(COST[f[0]] for f in pre[g+1]) if g+1 < ng else 0) for g in range(ng)])
    for g, (j, ch, blk, tb) in enumerate(seq):
        tap = {"P": 2, "Q": 1, "R": 0}[ch]
        base = {"P": V_P, "Q": V_Q, "R": V_R}[ch]
        D = accreg(base, blk, tb); C = D
        if j == 0: C = {"P": accreg(V_Q, blk, tb), "Q": accreg(V_R, blk, tb), "R": None}[ch]
        if j == 7 and ch == "P": D = accreg(V_E[m & 1], blk, tb)
        emit_all(pre[g])
        e.i(mf(D, tap, j, blk, ring_reg(m, j, tb), C))
        emit_all(gaps[g])

def prologue():
    E0 = V_E[0]
    XA_, XB_ = V_XB[0], V_XB[1]
    def frag(buf, j, tb): return buf + 8*j + 4*tb
    items = [("X", -2), ("W", 0), ("W", 1), ("W", 2), ("W", 3), ("X", -1), ("W", 4), ("W", 5), ("W", 6), ("W", 7),
             ("X", 0), ("W", 8), ("W", 9), ("W", 10), ("W", 11), ("X", 1), ("X", 2), ("X", 3)]
    def name(it): return f"{it[0]}{it[1]}"
    xbuf = {-2: XB_, -1: XA_, 0: XB_}
    def wtags(q): return [f"w{q}_{jp}_{blk}_{s}" for jp in range(2) for blk in range(2) for s in range(2)]
    def xtags(m): return [f"x{m}_{j}_{tb}" for j in range(8) for tb in range(2)]
    slot_free = {}
    for q in range(6, 12): slot_free[f"W{q}"] = wtags(q-6)
    slot_free["X2"] = xtags(-2); slot_free["X3"] = xtags(-1)
    started = set()
    def product(q, m, acc):
        tap, qq = q >> 2, q & 3
        out = []
        for jp in range(2):
            j = 2*qq + jp
            for blk in range(2):
                for tb in range(2):
                    D = accreg(acc, blk, tb)
                    first = (acc, blk, tb) not in started
                    started.add((acc, blk, tb))
                    tags = [f"w{q}_{jp}_{blk}_0", f"w{q}_{jp}_{blk}_1", f"x{m}_{j}_{tb}"]
                    out.append((mf(D, tap, j, blk, frag(xbuf[m], j, tb), None if first else D), tags))
        return out
    phases = []
    def xq(m, qq): return [xread(m, j, tb, frag(xbuf[m], j, tb)) for j in (2*qq, 2*qq+1) for tb in range(2)]
    def xall(m): return [r for qq in range(4) for r in xq(m, qq)]
    phases.append((["X-2", "W0"], wreads(0)[:4] + xq(-2, 0)[:2] + wreads(0)[4:] + xq(-2, 0)[2:], [(0, -2, E0)]))
    for q in (1, 2, 3):
        phases.append(([f"W{q}"], wreads(q)[:4] + xq(-2, q)[:2] + wreads(q)[4:] + xq(-2, q)[2:], [(q, -2, E0)]))
    phases.append((["X-1"], xall(-1), [(q, -1, V_Q) for q in range(4)]))
    for q in range(4, 8): phases.append(([f"W{q}"], wreads(q), [(q, -1, E0)]))
    phases.append((["X0"], xall(0), [(q, 0, V_R) for q in range(4)] + [(q, 0, V_Q) for q in range(4, 8)]))
    for q in range(8, 12): phases.append(([f"W{q}"], wreads(q), [(q, 0, E0)]))
    ringreads = [xread(1, j, tb, ring_reg(1, j, tb)) for j in range(cfg.pf) for tb in range(2)]
    phases.append((["X1"], ringreads, []))
    dma = deque()
    for it in items:
        lst = issue_x(it[1]) if it[0] == "X" else issue_w(it[1])
        if cfg.loop and it in (("X", 2), ("X", 3)):
            lst = lst + [("vmem", f"buffer_load_dword v0, v{V_OOB}, {sr(S_X,4)}, 0 offen", "D")]
        for k, x in enumerate(lst): dma.append((name(it), k, x))
    t = 0; last_mf = -100; ta = 0
    arrival = {}; rdy = {}
    reads = deque(); mq = deque()
    pi = 0
    issued_addr2 = False
    def tick(n=4):
        nonlocal t
        t += n
    def dma_ok():
        if not dma: return False
        nm = dma[0][0]
        return all(tg in e.safe for tg in slot_free.get(nm, []))
    def do_dma():
        nonlocal t, ta
        nm, k, x = dma.popleft()
        if x[0] == "vmem":
            t = max(t, ta - cfg.pace*cfg.ahead)
            ta = max(ta, t) + cfg.pace
            arrival[nm] = ta + cfg.lat
        emit(x); tick()
    def dma_time():
        if dma[0][2][0] != "vmem": return 0
        return ta - cfg.pace*cfg.ahead
    def phase_time():
        return max(arrival.get(n, 1 << 30) for n in phases[pi][0])
    def do_phase():
        nonlocal t, pi
        names, rds, prods = phases[pi]
        t = max(t, phase_time())
        idx = e._need(e.vm, names)
        parts = []
        if idx >= 0:
            parts.append(f"vmcnt({len(e.vm)-1-idx})"); e.vm = e.vm[idx+1:]
        if e.lg:
            parts.append("lgkmcnt(0)"); e.lg = []
        if parts: e.i("s_waitcnt " + " ".join(parts)); tick()
        e.barrier(); tick(12)
        if cfg.stamps and names[0] in ("X-2", "X-1", "X0", "X1"): e.stamp(f"phase {names}")
        for r in rds: reads.append(r)
        for p in prods:
            for x in product(*p): mq.append(x)
        pi += 1
    def do_read():
        r = reads.popleft()
        emit(r); rdy[r[2]] = t + cfg.ldslat; tick()
    def mf_ready():
        if not mq: return None
        tags = mq[0][1]
        if any(tg not in e.lg_all for tg in tags): return None
        return max(rdy.get(tg, 0) for tg in tags)
    def do_mf():
        nonlocal t, last_mf
        s, tags = mq.popleft()
        t = max(t, mf_ready_cache[0])
        if e.wait(lg=tags): tick()
        t = max(t, last_mf + 16)
        last_mf = t
        e.i(s); t += 8
    mf_ready_cache = [0]
    ndma = 0
    while dma or reads or mq or pi < len(phases):
        r = mf_ready(); mf_ready_cache[0] = r or 0
        in_shadow = t < last_mf + 16
        if not issued_addr2 and (not dma or dma[0][0] == "W2"):
            gen_addr2(); t += 150; issued_addr2 = True; continue
        if reads and (in_shadow or r is None or r > t):
            do_read(); continue
        if dma and dma_ok() and dma_time() <= t and (in_shadow or r is None or r > t or dma[0][2][0] == "vmem"):
            do_dma(); continue
        if pi < len(phases) and not reads and issued_addr2 and phase_time() <= t:
            do_phase(); continue
        if r is not None and r <= t + 8:
            do_mf(); continue
        cand = []
        if r is not None: cand.append((r, 0, do_mf))
        if dma and dma_ok(): cand.append((dma_time(), 1, do_dma))
        if pi < len(phases) and not reads and issued_addr2 and phase_time() < (1 << 30): cand.append((phase_time(), 2, do_phase))
        if reads: cand.append((t, -1, do_read))
        assert cand, f"prologue deadlock t={t} pi={pi} dma={dma[0] if dma else None}"
        cand.sort(key=lambda c: (c[0], c[1]))
        cand[0][2]()
    return t

def gen_head():
    e.raw(f"; @launch grid=(256,1,1) block=(256,1,1) lds=163840")
    e.raw('.amdgcn_target "amdgcn-amd-amdhsa--gfx950"')
    e.raw(".text")
    e.raw(f".globl {KNAME}")
    e.raw(".p2align 8")
    e.raw(f".type {KNAME},@function")
    e.raw(f"{KNAME}:")
    e.i("s_cmp_ge_u32 s2, 256")
    e.i("s_cbranch_scc1 L_end")
    e.i(f"s_load_dwordx2 s[{S_X}:{S_X+1}], s[0:1], 0")
    e.i(f"s_load_dwordx2 s[{S_W}:{S_W+1}], s[0:1], 8")
    e.i(f"s_load_dwordx2 s[{S_O}:{S_O+1}], s[0:1], 16")
    if cfg.stamps:
        e.i("s_load_dwordx2 s[42:43], s[0:1], 32")
        e.i("s_memtime s[100:101]")
        e.i("s_memrealtime s[96:97]")
    e.i("v_lshrrev_b32 v1, 6, v0")
    e.i("v_and_b32 v0, 63, v0")
    e.i(f"v_readfirstlane_b32 s{S_WAVE}, v1")
    e.i(f"s_and_b32 s{S_T0}, s2, 7")
    e.i(f"s_lshr_b32 s{S_T1}, s2, 3")
    e.i(f"s_and_b32 s{S_CG}, s{S_T1}, 3")
    e.i(f"s_lshr_b32 s{S_T1}, s{S_T1}, 2")
    e.i(f"s_lshl_b32 s{S_T0}, s{S_T0}, 3")
    e.i(f"s_add_u32 s{S_T0}, s{S_T0}, s{S_T1}")
    e.i(f"s_and_b32 s{S_BLK}, s{S_T0}, 15")
    e.i(f"s_lshr_b32 s{S_T1}, s{S_T0}, 4")
    e.i(f"s_and_b32 s{S_PAR}, s{S_T1}, 1")
    e.i(f"s_lshr_b32 s{S_B}, s{S_T1}, 1")
    e.i(f"s_mul_i32 s{S_T0}, s{S_B}, 16000")
    e.i(f"s_lshl_b32 s{S_T1}, s{S_BLK}, 10")
    e.i(f"s_add_u32 s{S_T0}, s{S_T0}, s{S_T1}")
    e.i(f"s_add_u32 s{S_T0}, s{S_T0}, s{S_PAR}")
    e.i(f"s_lshl_b32 s{S_T0}, s{S_T0}, 9")
    e.i(f"s_lshl_b32 s{S_M0X}, s{S_WAVE}, 12")
    s0, s1, s2_, s3 = V_S, V_S+1, V_S+2, V_S+3
    e.i(f"v_lshrrev_b32 v{s0}, 5, v0")
    e.i(f"v_and_b32 v{s1}, 31, v0")
    e.i(f"s_lshl_b32 s{S_T1}, s{S_WAVE}, 3")
    e.i(f"v_add_u32 v{s0}, s{S_T1}, v{s0}")
    e.i(f"s_cmp_eq_u32 s{S_BLK}, 15")
    e.i(f"s_cselect_b32 s{S_T2}, 20, 32")
    for k in range(4):
        e.i(f"v_add_u32 v{s2_}, {2*k}, v{s0}")
        e.i(f"v_and_b32 v{s3}, 15, v{s2_}")
        e.i(f"v_xor_b32 v{s3}, v{s3}, v{s1}")
        e.i(f"v_lshlrev_b32 v{s3}, 4, v{s3}")
        e.i(f"v_lshl_add_u32 v{s3}, v{s2_}, 14, v{s3}")
        e.i(f"v_add_u32 v{s3}, s{S_T0}, v{s3}")
        if k: e.i(f"v_subrev_u32 v{s3}, {1024*k}, v{s3}")
        e.i(f"v_cmp_gt_u32 vcc, s{S_T2}, v{s2_}")
        e.i(f"v_mov_b32 v{V_XOFF+k}, 0x80000000")
        e.i(f"s_nop 0")
        e.i(f"v_cndmask_b32 v{V_XOFF+k}, v{V_XOFF+k}, v{s3}, vcc")
    for k in range(4):
        e.i(f"v_subrev_u32 v{V_XH+k}, 2048, v{V_XOFF+k}")
    e.i(f"s_or_b32 s{S_T1}, s{S_BLK}, s{S_WAVE}")
    e.i(f"s_cmp_eq_u32 s{S_T1}, 0")
    e.i(f"s_cselect_b32 s{S_T1}, 32, 0")
    e.i(f"v_cmp_gt_u32 vcc, s{S_T1}, v0")
    e.i(f"v_mov_b32 v{s0}, 0x80000000")
    e.i(f"s_nop 0")
    e.i(f"v_cndmask_b32 v{V_XH}, v{V_XH}, v{s0}, vcc")
    e.i(f"v_lshrrev_b32 v{s0}, 4, v0")
    e.i(f"v_lshlrev_b32 v{s0}, 12, v{s0}")
    e.i(f"s_lshl_b32 s{S_T1}, s{S_WAVE}, 14")
    e.i(f"s_lshl_b32 s{S_T2}, s{S_CG}, 7")
    e.i(f"s_add_u32 s{S_T1}, s{S_T1}, s{S_T2}")
    e.i(f"v_add_u32 v{s0}, s{S_T1}, v{s0}")
    e.i(f"v_and_b32 v{s1}, 1, v0")
    e.i(f"v_lshl_add_u32 v{s0}, v{s1}, 4, v{s0}")
    e.i(f"v_bfe_u32 v{s1}, v0, 1, 3")
    e.i(f"v_lshrrev_b32 v{s2_}, 5, v0")
    e.i(f"v_lshlrev_b32 v{s2_}, 2, v{s2_}")
    e.i(f"v_xor_b32 v{s1}, v{s1}, v{s2_}")
    for k in range(4):
        e.i(f"v_xor_b32 v{s2_}, {k}, v{s1}")
        e.i(f"v_and_b32 v{s3}, 3, v{s2_}")
        e.i(f"v_lshl_add_u32 v{V_WOFF+k}, v{s3}, 5, v{s0}")
        e.i(f"v_lshrrev_b32 v{s3}, 2, v{s2_}")
        e.i(f"v_lshl_add_u32 v{V_WOFF+k}, v{s3}, 9, v{V_WOFF+k}")

def gen_addr2():
    s0, s1, s2_, s3 = V_S, V_S+1, V_S+2, V_S+3
    e.i(f"v_and_b32 v{s0}, 15, v0")
    e.i(f"v_lshrrev_b32 v{s1}, 4, v0")
    e.i(f"v_xor_b32 v{s2_}, v{s0}, v{s1}")
    e.i(f"v_lshlrev_b32 v{s2_}, 4, v{s2_}")
    e.i(f"v_lshl_add_u32 v{V_XA}, v{s0}, 9, v{s2_}")
    for jj in range(1, 4):
        e.i(f"v_xor_b32 v{V_XA+jj}, {64*jj}, v{V_XA}")
    e.i(f"v_bfe_u32 v{s0}, v0, 2, 2")
    e.i(f"v_bfe_u32 v{s1}, v0, 4, 1")
    e.i(f"v_lshlrev_b32 v{s2_}, 2, v{s1}")
    e.i(f"v_xor_b32 v{s2_}, s{S_WAVE}, v{s2_}")
    e.i(f"v_xor_b32 v{s2_}, v{s2_}, v{s0}")
    e.i(f"v_lshlrev_b32 v{s2_}, 5, v{s2_}")
    e.i(f"v_lshl_add_u32 v{s2_}, v{s0}, 10, v{s2_}")
    e.i(f"v_lshl_add_u32 v{s2_}, v{s1}, 9, v{s2_}")
    e.i(f"v_lshrrev_b32 v{s0}, 5, v0")
    e.i(f"v_lshl_add_u32 v{s2_}, v{s0}, 12, v{s2_}")
    e.i(f"v_and_b32 v{s0}, 1, v0")
    e.i(f"v_lshl_add_u32 v{s2_}, v{s0}, 4, v{s2_}")
    e.i(f"v_and_b32 v{s0}, 2, v0")
    e.i(f"v_lshl_add_u32 v{s2_}, v{s0}, 2, v{s2_}")
    e.i(f"v_add_u32 v{V_WA}, 0x10000, v{s2_}")
    e.i(f"v_xor_b32 v{V_WA+1}, 128, v{V_WA}")
    e.i(f"v_add_u32 v{V_WA+2}, 0x10000, v{V_WA}")
    e.i(f"v_add_u32 v{V_WA+3}, 0x10000, v{V_WA+1}")
    e.i(f"v_lshrrev_b32 v{s0}, 5, v0")
    e.i(f"v_and_b32 v{s1}, 15, v0")
    e.i(f"v_lshl_add_u32 v{s0}, v{s0}, 4, v{s1}")
    e.i(f"v_bfe_u32 v{s1}, v0, 4, 1")
    e.i(f"s_lshl_b32 s{S_T1}, s{S_CG}, 7")
    e.i(f"s_add_u32 s{S_T1}, s{S_T1}, s{S_T0}")
    e.i(f"s_lshl_b32 s3, s{S_WAVE}, 5")
    e.i(f"s_add_u32 s3, s3, s{S_T1}")
    e.i(f"v_lshlrev_b32 v{s2_}, 14, v{s0}")
    e.i(f"v_lshl_add_u32 v{s2_}, v{s1}, 4, v{s2_}")
    e.i(f"v_add_u32 v{s2_}, s3, v{s2_}")
    e.i(f"s_cmp_eq_u32 s{S_BLK}, 15")
    e.i(f"s_cselect_b32 s{S_T2}, 20, 32")
    e.i(f"v_cmp_gt_u32 vcc, s{S_T2}, v{s0}")
    e.i(f"v_mov_b32 v{V_OOFF}, 0x80000000")
    e.i(f"s_nop 0")
    e.i(f"v_cndmask_b32 v{V_OOFF}, v{V_OOFF}, v{s2_}, vcc")
    if cfg.omode == "lds":
        e.i(f"s_lshl_b32 s3, s{S_WAVE}, 1")
        e.i(f"v_add_u32 v{s1}, s3, v{s1}")
        e.i(f"v_bfe_u32 v{s2_}, v{s0}, 1, 3")
        e.i(f"v_xor_b32 v{s1}, v{s1}, v{s2_}")
        e.i(f"v_lshlrev_b32 v{s1}, 4, v{s1}")
        e.i(f"v_lshl_add_u32 v{s1}, v{s0}, 7, v{s1}")
        e.i(f"v_add_u32 v{V_OW}, {OBUF}, v{s1}")
        e.i(f"s_lshl_b32 s3, s{S_WAVE}, 10")
        e.i(f"s_add_u32 s3, s3, {OBUF}")
        e.i(f"v_lshlrev_b32 v{s1}, 4, v0")
        e.i(f"v_add_u32 v{V_OR}, s3, v{s1}")
        e.i(f"s_lshl_b32 s3, s{S_WAVE}, 3")
        e.i(f"v_lshrrev_b32 v{s0}, 3, v0")
        e.i(f"v_add_u32 v{s0}, s3, v{s0}")
        e.i(f"v_bfe_u32 v{s1}, v{s0}, 1, 3")
        e.i(f"v_and_b32 v{s2_}, 7, v0")
        e.i(f"v_xor_b32 v{s1}, v{s1}, v{s2_}")
        e.i(f"v_lshlrev_b32 v{s1}, 4, v{s1}")
        e.i(f"v_lshl_add_u32 v{s1}, v{s0}, 14, v{s1}")
        e.i(f"v_add_u32 v{s1}, s{S_T1}, v{s1}")
        e.i(f"v_cmp_gt_u32 vcc, s{S_T2}, v{s0}")
        e.i(f"v_mov_b32 v{V_OG}, 0x80000000")
        e.i(f"s_nop 0")
        e.i(f"v_cndmask_b32 v{V_OG}, v{V_OG}, v{s1}, vcc")
    if cfg.loop: e.i(f"v_mov_b32 v{V_OOB}, 0x80000000")
    e.i(f"s_mov_b32 s{S_C1}, 0x{f2u(-2.0*math.log2(math.e)):08x}")
    e.i(f"s_mov_b32 s{S_C2}, 0x{f2u(-math.log2(math.e)):08x}")
    e.i(f"s_mov_b32 s{S_CL}, 0x{f2u(32.0):08x}")

def srds_const():
    for (S, nbytes) in ((S_X, 16384000), (S_W, 786432), (S_O, 16384000)):
        e.i(f"s_mov_b32 s{S+2}, {nbytes}")
        e.i(f"s_mov_b32 s{S+3}, 0x20000")
def srds():
    for S in (S_X, S_W, S_O):
        e.i(f"s_and_b32 s{S+1}, s{S+1}, 0xffff")

def main():
    gen_head()
    srds_const()
    e.i("s_waitcnt lgkmcnt(0)")
    srds()
    e.stamp("start-issue")
    prologue()
    lds = cfg.omode == "lds"
    if cfg.loop:
        assert 16 % cfg.ring == 0
        e.wait_lg_all()
        for jj in range(4): e.i(f"v_xor_b32 v{V_XA+jj}, 0x8000, v{V_XA+jj}")
        e.i(f"s_add_u32 s{S_M0H}, s{S_M0X}, 32768")
        e.i(f"s_mov_b32 s{S_OSOFF}, {-2048 if lds else -1024}")
        if lds: e.i(f"v_mov_b32 v{V_OG2}, 0x80000000")
        e.stamp("enter steady")
        texts = {}
        head = e.lines
        for m in range(1, 13):
            e.lines = []
            step(m, ["P", "Q", "R"], m-1, not lds, (m-2 if lds else None))
            texts[m] = e.lines
        e.lines = head
        for m in range(3, 13):
            assert texts[m] == texts[5 + ((m+1) & 1)], f"step {m} differs"
        for m in (1, 2):
            ref = texts[5 + ((m+1) & 1)]
            a = [l for l in texts[m] if "s_waitcnt" not in l]; b = [l for l in ref if "s_waitcnt" not in l]
            assert a == b, f"step {m} differs in more than waits"
            wa = [(i, l) for i, l in enumerate(texts[m]) if "s_waitcnt" in l]
            if texts[m] != ref:
                import difflib
                print(f"; step {m} wait differences:", [d for d in difflib.unified_diff(texts[m], ref, lineterm="", n=1)], file=sys.stderr)
        if cfg.align: e.raw(f".p2align {cfg.align}")
        e.raw("L_loop:")
        e.lines += texts[5] + texts[6]
        e.i(f"s_cmp_lt_u32 s{S_XSOFF}, {15*1024}")
        e.i("s_cbranch_scc1 L_loop")
        step(13, ["P", "Q", "R"], 12, not lds, (11 if lds else None))
    else:
        e.stamp("enter steady")
        for m in range(1, 14):
            step(m, ["P", "Q", "R"], m-1, not lds, (m-2 if lds and m >= 2 else None))
    e.stamp("steady done")
    step(14, ["P", "Q"], 13, not lds, 12 if lds else None)
    if lds:
        step(15, ["P"], 14, True, 13)
    else:
        step(15, ["P"], 14, True, None)
    e.stamp("mfma done")
    e.i("s_nop 7")
    for o in epilogue_ops(15, True, cfg.store_flags if not lds else cfg.tail_flags): emit(o[1:])
    if cfg.stamps:
        e.i("s_waitcnt vmcnt(0) lgkmcnt(0)")
        e.stamp("end")
        e.i("s_memrealtime s[98:99]")
        e.i("s_waitcnt lgkmcnt(0)")
        e.i(f"s_lshl_b32 s3, s2, 2")
        e.i(f"s_add_u32 s3, s3, s{S_WAVE}")
        e.i(f"s_lshl_b32 s3, s3, 8")
        e.i(f"s_add_u32 s42, s42, s3")
        e.i(f"s_addc_u32 s43, s43, 0")
        e.i(f"v_mov_b32 v0, 0")
        def st(a, off):
            e.i(f"v_mov_b32 v2, s{a}"); e.i(f"v_mov_b32 v3, s{a+1}")
            e.i(f"global_store_dwordx2 v0, v[2:3], s[42:43] offset:{off}"); e.i("s_nop 1")
        st(100, 0)
        for k in range(e.nstamp):
            st(44+4*k, 8*(k+1)); st(46+4*k, 8*(k+1)+112)
        st(96, 232); st(98, 240)
        e.i("s_getreg_b32 s3, hwreg(HW_REG_XCC_ID)")
        e.i("v_mov_b32 v2, s3")
        e.i("s_getreg_b32 s3, hwreg(HW_REG_HW_ID)")
        e.i("v_mov_b32 v3, s3")
        e.i(f"global_store_dwordx2 v0, v[2:3], s[42:43] offset:248")
    e.raw("L_end:")
    e.i("s_endpgm")
    e.raw('.section .rodata,"a"')
    e.raw(".p2align 6")
    e.raw(f".amdhsa_kernel {KNAME}")
    e.raw(f"  .amdhsa_next_free_vgpr {((NV+3)//4)*4 + 192}")
    e.raw("  .amdhsa_next_free_sgpr 102")
    e.raw(f"  .amdhsa_accum_offset {((NV+3)//4)*4}")
    e.raw("  .amdhsa_group_segment_fixed_size 0")
    e.raw("  .amdhsa_kernarg_size 40")
    e.raw("  .amdhsa_user_sgpr_count 2")
    e.raw("  .amdhsa_user_sgpr_kernarg_segment_ptr 1")
    e.raw("  .amdhsa_system_sgpr_workgroup_id_x 1")
    e.raw("  .amdhsa_float_denorm_mode_32 3")
    e.raw(".end_amdhsa_kernel")
    hdr = open("standalone__autoregressive_conv_wavernn__speech.s.ref").read().split("; Override")[0]
    open(sys.argv[1], "w").write(hdr + "\n".join(e.lines) + "\n")

main()
```

```python
import sys, math, struct
from collections import deque

KNAME = "standalone__autoregressive_conv_wavernn__speech_kernel"

class Cfg:
    stamps = 0
    store_flags = "sc1"
    tail_flags = ""
    xflags = ""
    wflags = ""
    order = "C"
    bar_gap = 24
    dma0 = 2
    dma_gap = 2
    rd_last = 88
    epi_start = 2
    cap = 2
    lat = 800
    ahead = 1
    pace = 64
    pace2 = 72
    ldslat = 140
    margin = 0
    lead = 14
    corder = 1
    pcap = 3
    tsplit = 1
    noepi = 0
    nobar = 0
    nodma = 0
    dump = -99
    loop = 1
    align = 0
    mbload = 0
    mbwin = 6
    swz = 1
    light = 0
    dbg = 0

cfg = Cfg()
for a in sys.argv[2:]:
    k, v = a.split("=", 1)
    old = getattr(cfg, k)
    if isinstance(old, bool): v = v in ("1", "true", "True")
    elif isinstance(old, int): v = int(v)
    setattr(cfg, k, v)

def f2u(x): return struct.unpack("<I", struct.pack("<f", x))[0]

S_X, S_W, S_O = 12, 16, 20
S_WAVE, S_CG, S_BLK, S_B, S_PAR = 24, 25, 26, 27, 28
S_T0, S_T1, S_T2 = 29, 30, 31
S_C1, S_C2, S_CL = 32, 33, 34
S_XSOFF, S_OSOFF = 35, 36
S_WSOFF = 37
S_M0X = 38
S_M0H = 39
S_TSOFF = 40
S_XMIN = 41
V_XOFF = 1
V_WOFF = 5
V_XH = 9
V_XA = 13
V_WA = 17
V_OOFF = 21
V_OW = 22
V_OR = 23
V_OG = 24
V_S = 25
V_ORD = 28
V_O2 = [32, 33]
V_OOB = 34
V_T2 = 36
V_Q, V_R = 48, 64
V_E = [80, 96]
V_T = 112
V_OUT = 124
V_XB = [128, 192]
A_XB = 192
NV = 256
OBUF = 65536

def vr(b, n): return f"v[{b}:{b+n-1}]"
def ar(b, n): return f"a[{b}:{b+n-1}]"
def sr(b, n): return f"s[{b}:{b+n-1}]"

class E:
    def __init__(self):
        self.lines = []; self.vm = []; self.lg = []; self.ninstr = 0; self.nstamp = 0
        self.safe = set(); self.lg_all = set()
    def raw(self, s): self.lines.append(s)
    def i(self, s):
        self.lines.append("    " + s); self.ninstr += 1
    def vmem(self, s, tag):
        self.i(s); self.vm.append(tag)
        assert len(self.vm) <= 63, "vmcnt overflow"
    def lds(self, s, tag):
        if len(self.lg) >= 15:
            self.wait(lg=[self.lg[0]])
        self.i(s); self.lg.append(tag); self.lg_all.add(tag)
    def _need(self, lst, tags):
        idx = -1
        for k, t in enumerate(lst):
            if t in tags: idx = k
        return idx
    def wait(self, vm=None, lg=None):
        parts = []
        if vm:
            idx = self._need(self.vm, vm)
            if idx >= 0:
                parts.append(f"vmcnt({len(self.vm)-1-idx})"); self.vm = self.vm[idx+1:]
        if lg:
            idx = self._need(self.lg, lg)
            if idx >= 0:
                parts.append(f"lgkmcnt({len(self.lg)-1-idx})")
                self.lg = self.lg[idx+1:]
        if parts: self.i("s_waitcnt " + " ".join(parts)); return True
        return False
    def wait_lg_all(self):
        if self.lg:
            self.lg = []; self.i("s_waitcnt lgkmcnt(0)")
    def barrier(self):
        self.safe |= (self.lg_all - set(self.lg))
        self.i("s_barrier")
    def stamp(self, name, level=1):
        if cfg.light:
            k = self.nstamp; self.nstamp += 1
            assert 44 + 2*k + 1 < 96
            self.i(f"s_memtime s[{44+2*k}:{45+2*k}]")
            LIGHT.append(name)
            return
        if cfg.stamps < level: return
        k = self.nstamp; self.nstamp += 1
        assert 44 + 4*k + 3 < 96
        self.wait_lg_all()
        self.i(f"s_memtime s[{44+4*k}:{45+4*k}]")
        self.i(f"s_memrealtime s[{46+4*k}:{47+4*k}]")
        self.i("s_waitcnt lgkmcnt(0)")

LIGHT = []
e = E()

def xslot(m): return {-1: 0, -2: 1, 0: 2, 1: 3}.get(m, (m + 2) & 3)
def wslot(q): return q % 6
def frag(m, j, tb):
    if m == 1: return ar(A_XB + 8*j + 4*tb, 4)
    b = {-1: V_XB[0], -2: V_XB[0], 0: V_XB[1]}.get(m, V_XB[m & 1])
    return vr(b + 8*j + 4*tb, 4)

def issue_x(m):
    soff = 1024 if m == -1 else max(m, 0)*1024
    return [("salu", f"s_add_u32 m0, s{S_M0X}, {xslot(m)*16384}"),
            ("salu", f"s_mov_b32 s{S_XSOFF}, {soff}")] + \
           [("vmem", f"buffer_load_dwordx4 v{(V_XH if m < 0 else V_XOFF)+k}, {sr(S_X,4)}, s{S_XSOFF} offen offset:{1024*k} {cfg.xflags} lds", f"X{m}") for k in range(4)]

def issue_x_loop(m):
    if m & 1:
        setup = [("salu", f"s_mov_b32 m0, s{S_M0H}"), ("salu", f"s_add_u32 s{S_XSOFF}, s{S_XSOFF}, 1024"),
                 ("salu", f"s_min_u32 s{S_XMIN}, s{S_XSOFF}, {15*1024}")]
        so = S_XMIN; after = []
    else:
        setup = [("salu", f"s_add_u32 m0, s{S_M0H}, 16384"), ("salu", f"s_add_u32 s{S_XSOFF}, s{S_XSOFF}, 1024")]
        so = S_XSOFF; after = [("salu", f"s_xor_b32 s{S_M0H}, s{S_M0H}, 32768")]
    loads = [("vmem", f"buffer_load_dwordx4 v{V_XOFF+k}, {sr(S_X,4)}, s{so} offen offset:{1024*k} {cfg.xflags} lds", f"X{m+3}") for k in range(4)]
    return setup, loads, after

def issue_w(q):
    return [("salu", f"s_add_u32 m0, s{S_M0X}, {65536 + wslot(q)*16384}"),
            ("salu", f"s_mov_b32 s{S_WSOFF}, {q*65536}")] + \
           [("vmem", f"buffer_load_dwordx4 v{V_WOFF+k}, {sr(S_W,4)}, s{S_WSOFF} offen offset:{1024*k} {cfg.wflags} lds", f"W{q}") for k in range(4)]

def emit(item):
    kind = item[0]
    if kind == "vmem": e.vmem(item[1], item[2])
    elif kind == "lds": e.lds(item[1], item[2])
    elif kind == "waitvm": e.wait(vm=item[1])
    elif kind == "waitlg": e.wait(lg=item[1])
    elif kind == "bar": e.barrier()
    else: e.i(item[1])

def emit_all(items):
    for it in items: emit(it)

def xread(m, j, tb, rel=False):
    off = (xslot(m) & 1 if rel else xslot(m))*16384 + tb*8192 + 256*(j >> 2)
    return ("lds", f"ds_read_b128 {frag(m, j, tb)}, v{V_XA + (j & 3)} offset:{off}", f"x{m}_{j}_{tb}")
def xtags(m): return [f"x{m}_{j}_{tb}" for j in range(8) for tb in range(2)]

def areg(tap, j, blk): return ((tap*8 + j)*2 + blk)*4

def wreads(q):
    tap, qq = q >> 2, q & 3
    slot = wslot(q)
    out = []
    for jp in range(2):
        for blk in range(2):
            for s in range(2):
                base = V_WA + blk + (2 if slot >= 4 else 0)
                off = (slot & 3)*16384 + jp*8192 + s*256
                a = areg(tap, 2*qq + jp, blk) + 2*s
                out.append(("lds", f"ds_read_b64_tr_b16 {ar(a,2)}, v{base} offset:{off}", f"w{q}_{jp}_{blk}_{s}"))
    return out

def accreg(base, blk, tb): return base + (blk*2 + tb)*4

def mf(D, tap, j, blk, B, C):
    Cs = "0" if C is None else vr(C, 4)
    return f"v_mfma_f32_16x16x32_bf16 {vr(D,4)}, {ar(areg(tap, j, blk),4)}, {B}, {Cs}"

def glu_pair(f0, g0, t, dst):
    z0, z1, y0, y1, p0, p1 = t, t+1, t+2, t+3, t+4, t+5
    return [
        (1, "valu", f"v_mul_f32 v{z0}, s{S_C1}, v{f0}"),
        (1, "valu", f"v_mul_f32 v{z1}, s{S_C1}, v{f0+1}"),
        (1, "valu", f"v_mul_f32 v{y0}, s{S_C2}, v{g0}"),
        (1, "valu", f"v_mul_f32 v{y1}, s{S_C2}, v{g0+1}"),
        (1, "valu", f"v_min_f32 v{z0}, s{S_CL}, v{z0}"),
        (1, "valu", f"v_min_f32 v{z1}, s{S_CL}, v{z1}"),
        (2, "valu", f"v_exp_f32 v{y0}, v{y0}"),
        (2, "valu", f"v_exp_f32 v{y1}, v{y1}"),
        (2, "valu", f"v_exp_f32 v{z0}, v{z0}"),
        (2, "valu", f"v_exp_f32 v{z1}, v{z1}"),
        (1, "valu", f"v_add_f32 v{p0}, 1.0, v{z0}"),
        (1, "valu", f"v_add_f32 v{p1}, 1.0, v{z1}"),
        (1, "valu", f"v_fmac_f32 v{p0}, v{p0}, v{y0}"),
        (1, "valu", f"v_fmac_f32 v{p1}, v{p1}, v{y1}"),
        (2, "valu", f"v_rcp_f32 v{p0}, v{p0}"),
        (2, "valu", f"v_rcp_f32 v{p1}, v{p1}"),
        (1, "valu", f"v_fma_f32 v{z0}, -v{z0}, v{p0}, v{p0}"),
        (1, "valu", f"v_fma_f32 v{z1}, -v{z1}, v{p1}, v{p1}"),
        (1, "valu", f"v_cvt_pk_bf16_f32 v{dst}, v{z0}, v{z1}"),
    ]

def glu_half(Eb, tb, O):
    a = glu_pair(accreg(Eb, 0, tb), accreg(Eb, 1, tb), V_T, O)
    b = glu_pair(accreg(Eb, 0, tb) + 2, accreg(Eb, 1, tb) + 2, V_T + 6, O + 1)
    out = []
    for lo, hi in ((0, 6), (6, 10), (10, 14), (14, 16), (16, 19)):
        out += a[lo:hi] + b[lo:hi]
    return out

def epilogue_ops(m, mode, src=None):
    ops = []
    Eb = V_E[m & 1] if src is None else src
    O = V_OUT
    n = 0
    for tb in range(2):
        for pr in range(2):
            t = V_T + (6 if n & 1 else 0); n += 1
            ops += glu_pair(accreg(Eb, 0, tb) + 2*pr, accreg(Eb, 1, tb) + 2*pr, t, O + 2*tb + pr)
    ops.append((1, "salu", f"s_mov_b32 s{S_TSOFF}, {m*1024}" if mode == "direct" else "s_nop 0"))
    ops.append((1, "valu", f"v_permlane32_swap_b32 v{O}, v{O+2}"))
    ops.append((1, "valu", f"v_permlane32_swap_b32 v{O+1}, v{O+3}"))
    if mode == "direct":
        ops.append((1, "salu", "s_nop 0"))
        ops.append((2, "vmem", f"buffer_store_dwordx4 {vr(O,4)}, v{V_OOFF}, {sr(S_O,4)}, s{S_TSOFF} offen {cfg.tail_flags}", f"S{m}"))
    else:
        ops.append((1, "lds", f"ds_write_b128 v{V_OW}, {vr(O,4)} offset:{(m & 1)*4096}", f"ow{m}"))
    return ops

def epilogue_half(m, tb):
    O = V_OUT + 2*tb
    ops = glu_half(V_E[m & 1], tb, O)
    ops.append((1, "salu", f"s_mov_b32 s{S_TSOFF}, {m*1024}"))
    ops.append((2, "vmem", f"buffer_store_dwordx2 {vr(O,2)}, v{V_O2[tb]}, {sr(S_O,4)}, s{S_TSOFF} offen {cfg.tail_flags}", f"S{m}_{tb}"))
    return ops

def readback_ops(m):
    st = [("salu", f"s_add_u32 s{S_OSOFF}, s{S_OSOFF}, 1024"),
          ("waitlg", [f"or{m}"]),
          ("vmem", f"buffer_store_dwordx4 {vr(V_ORD,4)}, v{V_OG}, {sr(S_O,4)}, s{S_OSOFF} offen {cfg.store_flags}", f"S{m}")]
    return [("lds", f"ds_read_b128 {vr(V_ORD,4)}, v{V_OR} offset:{(m & 1)*4096}", f"or{m}")], st

COST = {"salu": 1, "vmem": 2, "lds": 1, "waitvm": 1, "waitlg": 1, "bar": 1, "valu": 1}

def fill(gaps, pre, streams, g0, spread=True, cap=None):
    ng = len(gaps)
    if cfg.noepi: return []
    ops = [(st, o) for st, lst in streams for o in lst]
    fixed = [sum(COST[f[0]] for f in gaps[g]) + (sum(COST[f[0]] for f in pre[g+1]) if g+1 < ng else 0) for g in range(ng)]
    total = sum(o[0] for _, o in ops)
    L = cfg.cap if cap is None else cap
    if spread:
        while sum(max(0, L - fixed[g]) for g in range(g0, ng)) < total + 4: L += 1
    room0 = [max(0, L - fixed[g]) for g in range(ng)]
    avail = sum(room0[g0:])
    rate = min(1.0, (total + 6) / avail) if spread else 1.0
    k = 0; credit = 0.0
    for g in range(g0, ng):
        credit += room0[g]*rate
        room = room0[g]
        while k < len(ops) and ops[k][0] <= g and ops[k][1][0] <= room and (not spread or ops[k][1][0] <= credit + 0.999):
            credit -= ops[k][1][0]; room -= ops[k][1][0]
            gaps[g].append(ops[k][1][1:]); k += 1
    return [o for _, o in ops[k:]]

def chain_regs(ch, m):
    tap = {"P": 2, "Q": 1, "R": 0}[ch]
    D = {"P": V_E[m & 1], "Q": V_Q, "R": V_R}[ch]
    C0 = {"P": V_Q, "Q": V_R, "R": None}[ch]
    return tap, D, C0

def run_gaps(seq, gaps, pre):
    for g, (m, ch, j, blk, tb) in enumerate(seq):
        tap, Db, C0 = chain_regs(ch, m)
        D = accreg(Db, blk, tb)
        C = D if j else (None if C0 is None else accreg(C0, blk, tb))
        emit_all(pre[g])
        e.i(mf(D, tap, j, blk, frag(m, j, tb), C))
        emit_all(gaps[g])

def group(m, ch, blk, tb): return [(m, ch, j, blk, tb) for j in range(8)]
def chain(m, ch, tbs=(0, 1)): return [x for tb in tbs for blk in range(2) for x in group(m, ch, blk, tb)]

def step_seq(m, chains):
    if cfg.order == "C":
        return [x for ch in chains for x in chain(m, ch)]
    return [(m, ch, j, blk, tb) for j in range(8) for ch in chains for blk in range(2) for tb in range(2)]

def dump(m, gaps, pre):
    if cfg.dump == m:
        ng = len(gaps)
        cst = lambda f: 2 if ("exp" in f[1] or "rcp" in f[1]) else COST[f[0]]
        print([sum(cst(f) for f in gaps[g]) + (sum(COST[f[0]] for f in pre[g+1]) if g+1 < ng else 0) for g in range(ng)])

def place_reads(gaps, m, g0, g1, rel):
    rds = [xread(m, j, tb, rel) for tb in range(2) for j in range(8)]
    for k, r in enumerate(rds):
        gaps[g0 + (k*(g1 - g0))//15].append(r)

def step(m):
    seq = step_seq(m, ["P", "Q", "R"])
    ng = len(seq)
    gaps = [[] for _ in range(ng)]; pre = [[] for _ in range(ng)]
    pre[0].append(("waitlg", xtags(m)))
    g = cfg.dma0
    if not cfg.nodma:
        setup, loads, after = issue_x_loop(m)
        gaps[g-2] += setup[:2]; gaps[g-1] += setup[2:]
        for k in range(4):
            gaps[g].append(loads[k]); g += cfg.dma_gap
        gaps[g-1] += after
    if m & 1:
        for jj in range(4): gaps[g + jj].append(("valu", f"v_xor_b32 v{V_XA+jj}, 0x8000, v{V_XA+jj}"))
        assert g + 4 <= cfg.bar_gap
    bg = cfg.bar_gap
    gaps[bg].append(("waitvm", [f"X{m+1}"]))
    gaps[bg].append(("waitlg", [f"ow{m-2}"]))
    if not cfg.nobar: gaps[bg].append(("bar", "s_barrier"))
    rd, st = readback_ops(m-2)
    gaps[bg+1] += rd
    place_reads(gaps, m+1, bg+2, cfg.rd_last, True)
    gaps[bg+12] += st[:2]; gaps[bg+13] += st[2:]
    rest = fill(gaps, pre, [(0, epilogue_ops(m-1, "lds"))], cfg.epi_start)
    gaps[-1] += [o[1:] for o in rest]
    dump(m, gaps, pre)
    run_gaps(seq, gaps, pre)

def tail():
    if cfg.tsplit:
        seq = chain(14, "P") + chain(14, "Q", (0,)) + chain(15, "P", (0,)) + chain(14, "Q", (1,)) + chain(15, "P", (1,))
        need15 = 48; done15_0 = 64
    else:
        seq = chain(14, "P") + chain(14, "Q") + chain(15, "P")
        need15 = 64; done15_0 = None
    ng = len(seq)
    gaps = [[] for _ in range(ng)]; pre = [[] for _ in range(ng)]
    pre[0].append(("waitlg", xtags(14)))
    bg = 8
    gaps[bg].append(("waitvm", ["X15"]))
    gaps[bg].append(("waitlg", ["ow12"]))
    gaps[bg].append(("bar", "s_barrier"))
    rd, st = readback_ops(12)
    gaps[bg+1] += rd
    place_reads(gaps, 15, bg+2, need15 - 8, True)
    pre[need15].append(("waitlg", xtags(15)))
    gaps[bg+12] += st[:2]; gaps[bg+13] += st[2:]
    e13 = epilogue_ops(13, "lds")
    rd13, st13 = readback_ops(13)
    e13 += [(1, "waitlg", ["ow13"]), (1, "bar", "s_barrier")] + [(1,) + rd13[0]]
    e14 = epilogue_ops(14, "direct")
    e14 = e14[:12] + [(1,) + st13[0], (1,) + st13[1], (2,) + st13[2]] + e14[12:]
    streams = [(0, e13), (34, e14)]
    if cfg.tsplit: streams.append((done15_0 + 2, epilogue_half(15, 0)))
    rest = fill(gaps, pre, streams, cfg.epi_start, spread=True)
    dump(14, gaps, pre)
    run_gaps(seq, gaps, pre)
    e.stamp("mfma done")
    for o in rest: emit(o[1:])
    e.i("s_nop 7")
    if cfg.tsplit:
        for o in epilogue_half(15, 1): emit(o[1:])
    else:
        for o in epilogue_ops(15, "direct"): emit(o[1:])

def prologue():
    O0, O1 = V_E[0], V_E[1]
    items = [("X", -1), ("W", 0), ("X", 0), ("W", 1), ("X", 1), ("W", 2), ("W", 3), ("W", 4), ("W", 5), ("W", 6), ("W", 7),
             ("X", -2), ("W", 8), ("W", 9), ("W", 10), ("W", 11), ("X", 2), ("X", 3), ("X", 4)]
    def name(it): return f"{it[0]}{it[1]}"
    def wtags(q): return [f"w{q}_{jp}_{blk}_{s}" for jp in range(2) for blk in range(2) for s in range(2)]
    slot_free = {}
    for q in range(6, 12): slot_free[f"W{q}"] = wtags(q-6)
    slot_free["X2"] = xtags(-1); slot_free["X3"] = xtags(-2); slot_free["X4"] = xtags(0)
    started = set()
    issued = set()
    def product(q, m, acc):
        tap, qq = q >> 2, q & 3
        out = []
        for blk in range(2):
            for tb in range(2):
                for jp in range(2):
                    j = 2*qq + jp
                    D = accreg(acc, blk, tb)
                    first = (acc, blk, tb) not in started
                    started.add((acc, blk, tb))
                    tags = [f"w{q}_{jp}_{blk}_0", f"w{q}_{jp}_{blk}_1", f"x{m}_{j}_{tb}"]
                    out.append([mf(D, tap, j, blk, frag(m, j, tb), None if first else D), tags, None])
        out[-1][2] = (q, m)
        return out
    def xq(m, qq, after=None): return [(xread(m, j, tb), after) for j in (2*qq, 2*qq+1) for tb in range(2)]
    def xall(m, after=None): return [r for qq in range(4) for r in xq(m, qq, None if after is None else after(qq))]
    def xall_tb(m, after): return [(xread(m, j, tb), after(j >> 1)) for tb in range(2) for j in range(8)]
    def wr(q): return [(r, None) for r in wreads(q)]
    phases = []
    phases.append((["X-1", "W0"], wr(0)[:4] + xq(-1, 0)[:2] + wr(0)[4:] + xq(-1, 0)[2:] + xall(-1)[4:], [(0, -1, O1)]))
    phases.append((["X0"], xall(0), [(0, 0, V_Q)]))
    phases.append((["W1"], wr(1), [(1, -1, O1), (1, 0, V_Q)]))
    phases.append((["X1"], xall(1), [(0, 1, V_R), (1, 1, V_R)]))
    for q in (2, 3): phases.append(([f"W{q}"], wr(q), [(q, -1, O1), (q, 0, V_Q), (q, 1, V_R)]))
    for q in range(4, 8): phases.append(([f"W{q}"], wr(q), [(q, -1, O0), (q, 0, O1), (q, 1, V_Q)]))
    phases.append((["X-2"], xall(-2, lambda qq: (4+qq, -1)), [(q, -2, O0) for q in range(4)]))
    P0 = lambda c: (8+c, 0, O0)
    P1 = lambda c: (8+c, 1, O1)
    if cfg.corder == 0:   co = [[P0(0), P1(0)], [P0(1), P1(1)], [P0(2), P1(2)], [P0(3), P1(3)]]
    elif cfg.corder == 1: co = [[P0(0)], [P0(1), P1(0)], [P0(2), P1(1)], [P0(3), P1(2), P1(3)]]
    elif cfg.corder == 2: co = [[P0(0)], [P0(1)], [P0(2), P1(0)], [P0(3), P1(1), P1(2), P1(3)]]
    else:                 co = [[P0(0)], [P0(1)], [P0(2)], [P0(3), P1(0), P1(1), P1(2), P1(3)]]
    for c in range(4): phases.append(([f"W{8+c}"], wr(8+c), co[c]))
    phases.append((["X2"], xall_tb(2, lambda qq: (qq, -2)), []))
    dma = deque()
    for it in items:
        lst = issue_x(it[1]) if it[0] == "X" else issue_w(it[1])
        if it in (("X", 3), ("X", 4)):
            lst = lst + [("vmem", f"buffer_load_dword v0, v{V_OOB}, {sr(S_X,4)}, 0 offen", "D")]
        for k, x in enumerate(lst): dma.append((name(it), k, x))
    if cfg.mbload:
        return mbload(items)
    t = 0; last_mf = -100; ta = 0
    arrival = {}; rdy = {}
    reads = deque(); mq = deque()
    pi = 0
    st = {"addr2": False, "nmf": 0, "epi": None, "epi_at": None, "since": {}}
    epi0 = deque(epilogue_ops(0, "lds"))
    def tick(n=4):
        nonlocal t
        t += n
    def dma_ok():
        if not dma: return False
        nm = dma[0][0]
        return all(tg in e.safe for tg in slot_free.get(nm, []))
    def pace(): return cfg.pace if st["nmf"] < 40 else cfg.pace2
    def do_dma():
        nonlocal t, ta
        nm, k, x = dma.popleft()
        if x[0] == "vmem":
            t = max(t, ta - pace()*cfg.ahead)
            ta = max(ta, t) + pace()
            arrival[nm] = ta + cfg.lat
        emit(x); tick()
    def dma_time():
        if dma[0][2][0] != "vmem": return 0
        return ta - pace()*cfg.ahead
    def phase_time():
        return max(arrival.get(n, 1 << 30) for n in phases[pi][0])
    def do_phase():
        nonlocal t, pi
        names, rds, prods = phases[pi]
        t = max(t, phase_time())
        idx = e._need(e.vm, names)
        parts = []
        if idx >= 0:
            parts.append(f"vmcnt({len(e.vm)-1-idx})"); e.vm = e.vm[idx+1:]
        if e.lg:
            parts.append("lgkmcnt(0)"); e.lg = []
        if parts: e.i("s_waitcnt " + " ".join(parts)); tick()
        e.barrier(); tick(12)
        e.raw(f"    ; phase {names} t={t} mfma={st['nmf']}")
        if names[0] in ("X-1", "X1", "W4", "X-2", "X2") or cfg.light: e.stamp(f"{names[0]}@{st['nmf']}", 2)
        for r in rds: reads.append(r)
        for p in prods:
            for x in product(*p): mq.append(x)
        pi += 1
    def read_ok():
        if not reads: return False
        a = reads[0][1]
        return a is None or (a in st["since"] and st["nmf"] >= st["since"][a] + 2) or (a in st["since"] and not mq)
    def do_read():
        r = reads.popleft()[0]
        emit(r); rdy[r[2]] = t + cfg.ldslat; tick()
    def mf_ready():
        if not mq: return None
        tags = mq[0][1]
        if any(tg not in e.lg_all for tg in tags): return None
        return max(rdy.get(tg, 0) for tg in tags)
    mf_ready_cache = [0]
    def do_mf():
        nonlocal t, last_mf
        s, tags, fin = mq.popleft()
        t = max(t, mf_ready_cache[0])
        if e.wait(lg=tags): tick()
        t = max(t, last_mf + 16)
        last_mf = t
        e.i(s); t += 4
        st["nmf"] += 1
        if fin is not None:
            st["since"][fin] = st["nmf"]
            if fin == (11, 0): st["epi_at"] = st["nmf"] + 4
        st["slots"] = 0
    def n_queued_ready():
        n = 0
        for x in mq:
            if any(tg not in e.lg_all for tg in x[1]): break
            n += 1
        return n
    st["slots"] = 0
    def epi_ok():
        return (not cfg.noepi) and epi0 and st["epi_at"] is not None and st["nmf"] >= st["epi_at"]
    while dma or reads or mq or pi < len(phases):
        r = mf_ready(); mf_ready_cache[0] = r or 0
        in_shadow = t < last_mf + 16
        if not st["addr2"] and (not dma or dma[0][0] == "W1"):
            gen_addr2(); t += 150; st["addr2"] = True; continue
        if read_ok() and (in_shadow or r is None or r > t):
            do_read(); st["slots"] += 1; continue
        if dma and dma_ok() and dma_time() <= t and (in_shadow or r is None or r > t or dma[0][2][0] == "vmem"):
            do_dma(); st["slots"] += 1; continue
        if pi < len(phases) and not reads and st["addr2"] and phase_time() < (1 << 30):
            nq = n_queued_ready()
            if (phase_time() + cfg.margin <= t and (nq <= cfg.lead*3)) or (nq <= cfg.lead and phase_time() <= t):
                do_phase(); continue
        if epi_ok() and mq and st["slots"] + epi0[0][0] <= cfg.pcap:
            o = epi0.popleft(); emit(o[1:]); st["slots"] += o[0]; tick(4*o[0]); continue
        if r is not None and r <= t + 8:
            do_mf(); continue
        cand = []
        if r is not None: cand.append((r, 0, do_mf))
        if dma and dma_ok(): cand.append((dma_time(), 1, do_dma))
        if pi < len(phases) and not reads and st["addr2"] and phase_time() < (1 << 30): cand.append((phase_time(), 2, do_phase))
        if read_ok(): cand.append((t, -1, do_read))
        assert cand, f"prologue deadlock t={t} pi={pi} dma={dma[0] if dma else None} reads={reads[0] if reads else None}"
        cand.sort(key=lambda c: (c[0], c[1]))
        cand[0][2]()
    if epi0 and not cfg.noepi:
        if st["nmf"] <= st["epi_at"]: e.i("s_nop 7")
        e.raw(f"    ; exposed part of the first epilogue: {len(epi0)} ops")
        while epi0:
            o = epi0.popleft(); emit(o[1:]); tick(4*o[0])
    return t

def mbload(items):
    k = 0
    pend = deque()
    def mt():
        nonlocal k
        e.i(f"s_memtime s[{44+2*k}:{45+2*k}]"); k += 1
    mt()
    if cfg.mbload == 2:
        for n, it in enumerate(items[:6]):
            lst = issue_x(it[1]) if it[0] == "X" else issue_w(it[1])
            for x in lst:
                emit(x)
                if x[0] == "vmem": mt()
        items = []
    for n, it in enumerate(items):
        lst = issue_x(it[1]) if it[0] == "X" else issue_w(it[1])
        emit_all(lst)
        pend.append(f"{it[0]}{it[1]}")
        if len(pend) > cfg.mbwin:
            e.wait(vm=[pend.popleft()]); mt()
    while pend:
        e.wait(vm=[pend.popleft()]); mt()
    e.i("s_waitcnt lgkmcnt(0)")
    e.i(f"s_lshl_b32 s3, s2, 2")
    e.i(f"s_add_u32 s3, s3, s{S_WAVE}")
    e.i(f"s_lshl_b32 s3, s3, 8")
    e.i(f"s_add_u32 s42, s42, s3")
    e.i(f"s_addc_u32 s43, s43, 0")
    e.i(f"v_mov_b32 v0, 0")
    def st(a, off):
        e.i(f"v_mov_b32 v2, s{a}"); e.i(f"v_mov_b32 v3, s{a+1}")
        e.i(f"global_store_dwordx2 v0, v[2:3], s[42:43] offset:{off}"); e.i("s_nop 1")
    st(100, 0)
    for n in range(k): st(44 + 2*n, 8*(n+1))

def gen_head():
    e.raw(f"; @launch grid=(256,1,1) block=(256,1,1) lds=163840")
    e.raw('.amdgcn_target "amdgcn-amd-amdhsa--gfx950"')
    e.raw(".text")
    e.raw(f".globl {KNAME}")
    e.raw(".p2align 8")
    e.raw(f".type {KNAME},@function")
    e.raw(f"{KNAME}:")
    e.i("s_cmp_ge_u32 s2, 256")
    e.i("s_cbranch_scc1 L_end")
    e.i(f"s_load_dwordx2 s[{S_X}:{S_X+1}], s[0:1], 0")
    e.i(f"s_load_dwordx2 s[{S_W}:{S_W+1}], s[0:1], 8")
    e.i(f"s_load_dwordx2 s[{S_O}:{S_O+1}], s[0:1], 16")
    if cfg.stamps or cfg.mbload or cfg.light:
        e.i(f"s_load_dwordx2 s[42:43], s[0:1], {24 if cfg.dbg else 32}")
        e.i("s_memtime s[100:101]")
        e.i("s_memrealtime s[96:97]")
    e.i("v_lshrrev_b32 v1, 6, v0")
    e.i("v_and_b32 v0, 63, v0")
    e.i(f"v_readfirstlane_b32 s{S_WAVE}, v1")
    e.i(f"s_and_b32 s{S_T0}, s2, 7")
    e.i(f"s_lshr_b32 s{S_T1}, s2, 3")
    e.i(f"s_and_b32 s{S_CG}, s{S_T1}, 3")
    e.i(f"s_lshr_b32 s{S_T1}, s{S_T1}, 2")
    e.i(f"s_lshl_b32 s{S_T0}, s{S_T0}, 3")
    e.i(f"s_add_u32 s{S_T0}, s{S_T0}, s{S_T1}")
    e.i(f"s_and_b32 s{S_BLK}, s{S_T0}, 15")
    e.i(f"s_lshr_b32 s{S_T1}, s{S_T0}, 4")
    e.i(f"s_and_b32 s{S_PAR}, s{S_T1}, 1")
    e.i(f"s_lshr_b32 s{S_B}, s{S_T1}, 1")
    e.i(f"s_mul_i32 s{S_T0}, s{S_B}, 16000")
    e.i(f"s_lshl_b32 s{S_T1}, s{S_BLK}, 10")
    e.i(f"s_add_u32 s{S_T0}, s{S_T0}, s{S_T1}")
    e.i(f"s_add_u32 s{S_T0}, s{S_T0}, s{S_PAR}")
    e.i(f"s_lshl_b32 s{S_T0}, s{S_T0}, 9")
    e.i(f"s_lshl_b32 s{S_M0X}, s{S_WAVE}, 12")
    s0, s1, s2_, s3 = V_S, V_S+1, V_S+2, V_S+3
    e.i(f"v_lshrrev_b32 v{s0}, 5, v0")
    e.i(f"v_and_b32 v{s1}, 31, v0")
    e.i(f"s_lshl_b32 s{S_T1}, s{S_WAVE}, 3")
    e.i(f"v_add_u32 v{s0}, s{S_T1}, v{s0}")
    e.i(f"s_cmp_eq_u32 s{S_BLK}, 15")
    e.i(f"s_cselect_b32 s{S_T2}, 20, 32")
    for k in range(4):
        e.i(f"v_add_u32 v{s2_}, {2*k}, v{s0}")
        e.i(f"v_and_b32 v{s3}, 15, v{s2_}")
        e.i(f"v_xor_b32 v{s3}, v{s3}, v{s1}")
        e.i(f"v_lshlrev_b32 v{s3}, 4, v{s3}")
        e.i(f"v_lshl_add_u32 v{s3}, v{s2_}, 14, v{s3}")
        e.i(f"v_add_u32 v{s3}, s{S_T0}, v{s3}")
        if k: e.i(f"v_subrev_u32 v{s3}, {1024*k}, v{s3}")
        e.i(f"v_cmp_gt_u32 vcc, s{S_T2}, v{s2_}")
        e.i(f"v_mov_b32 v{V_XOFF+k}, 0x80000000")
        e.i(f"s_nop 0")
        e.i(f"v_cndmask_b32 v{V_XOFF+k}, v{V_XOFF+k}, v{s3}, vcc")
    for k in range(4):
        e.i(f"v_subrev_u32 v{V_XH+k}, 2048, v{V_XOFF+k}")
    e.i(f"s_or_b32 s{S_T1}, s{S_BLK}, s{S_WAVE}")
    e.i(f"s_cmp_eq_u32 s{S_T1}, 0")
    e.i(f"s_cselect_b32 s{S_T1}, 32, 0")
    e.i(f"v_cmp_gt_u32 vcc, s{S_T1}, v0")
    e.i(f"v_mov_b32 v{s0}, 0x80000000")
    e.i(f"s_nop 0")
    e.i(f"v_cndmask_b32 v{V_XH}, v{V_XH}, v{s0}, vcc")
    e.i(f"v_lshrrev_b32 v{s0}, 4, v0")
    e.i(f"v_lshlrev_b32 v{s0}, 12, v{s0}")
    e.i(f"s_lshl_b32 s{S_T1}, s{S_WAVE}, 14")
    e.i(f"s_lshl_b32 s{S_T2}, s{S_CG}, 7")
    e.i(f"s_add_u32 s{S_T1}, s{S_T1}, s{S_T2}")
    e.i(f"v_add_u32 v{s0}, s{S_T1}, v{s0}")
    e.i(f"v_and_b32 v{s1}, 1, v0")
    e.i(f"v_lshl_add_u32 v{s0}, v{s1}, 4, v{s0}")
    e.i(f"v_bfe_u32 v{s1}, v0, 1, 3")
    e.i(f"v_lshrrev_b32 v{s2_}, 5, v0")
    e.i(f"v_lshlrev_b32 v{s2_}, 2, v{s2_}")
    e.i(f"v_xor_b32 v{s1}, v{s1}, v{s2_}")
    for k in range(4):
        e.i(f"v_xor_b32 v{s2_}, {k}, v{s1}")
        e.i(f"v_and_b32 v{s3}, 3, v{s2_}")
        e.i(f"v_lshl_add_u32 v{V_WOFF+k}, v{s3}, 5, v{s0}")
        e.i(f"v_lshrrev_b32 v{s3}, 2, v{s2_}")
        e.i(f"v_lshl_add_u32 v{V_WOFF+k}, v{s3}, 9, v{V_WOFF+k}")

def gen_addr2():
    s0, s1, s2_, s3 = V_S, V_S+1, V_S+2, V_S+3
    e.i(f"v_and_b32 v{s0}, 15, v0")
    e.i(f"v_lshrrev_b32 v{s1}, 4, v0")
    e.i(f"v_xor_b32 v{s2_}, v{s0}, v{s1}")
    e.i(f"v_lshlrev_b32 v{s2_}, 4, v{s2_}")
    e.i(f"v_lshl_add_u32 v{V_XA}, v{s0}, 9, v{s2_}")
    for jj in range(1, 4):
        e.i(f"v_xor_b32 v{V_XA+jj}, {64*jj}, v{V_XA}")
    e.i(f"v_bfe_u32 v{s0}, v0, 2, 2")
    e.i(f"v_bfe_u32 v{s1}, v0, 4, 1")
    e.i(f"v_lshlrev_b32 v{s2_}, 2, v{s1}")
    e.i(f"v_xor_b32 v{s2_}, s{S_WAVE}, v{s2_}")
    e.i(f"v_xor_b32 v{s2_}, v{s2_}, v{s0}")
    e.i(f"v_lshlrev_b32 v{s2_}, 5, v{s2_}")
    e.i(f"v_lshl_add_u32 v{s2_}, v{s0}, 10, v{s2_}")
    e.i(f"v_lshl_add_u32 v{s2_}, v{s1}, 9, v{s2_}")
    e.i(f"v_lshrrev_b32 v{s0}, 5, v0")
    e.i(f"v_lshl_add_u32 v{s2_}, v{s0}, 12, v{s2_}")
    e.i(f"v_and_b32 v{s0}, 1, v0")
    e.i(f"v_lshl_add_u32 v{s2_}, v{s0}, 4, v{s2_}")
    e.i(f"v_and_b32 v{s0}, 2, v0")
    e.i(f"v_lshl_add_u32 v{s2_}, v{s0}, 2, v{s2_}")
    e.i(f"v_add_u32 v{V_WA}, 0x10000, v{s2_}")
    e.i(f"v_xor_b32 v{V_WA+1}, 128, v{V_WA}")
    e.i(f"v_add_u32 v{V_WA+2}, 0x10000, v{V_WA}")
    e.i(f"v_add_u32 v{V_WA+3}, 0x10000, v{V_WA+1}")
    e.i(f"v_lshrrev_b32 v{s0}, 5, v0")
    e.i(f"v_and_b32 v{s1}, 15, v0")
    e.i(f"v_lshl_add_u32 v{s0}, v{s0}, 4, v{s1}")
    e.i(f"v_bfe_u32 v{s1}, v0, 4, 1")
    e.i(f"s_lshl_b32 s{S_T1}, s{S_CG}, 7")
    e.i(f"s_add_u32 s{S_T1}, s{S_T1}, s{S_T0}")
    e.i(f"s_lshl_b32 s3, s{S_WAVE}, 5")
    e.i(f"s_add_u32 s{S_TSOFF}, s3, s{S_T1}")
    e.i(f"v_lshlrev_b32 v{s2_}, 14, v{s0}")
    e.i(f"v_lshl_add_u32 v{s2_}, v{s1}, 4, v{s2_}")
    e.i(f"v_add_u32 v{s2_}, s{S_TSOFF}, v{s2_}")
    e.i(f"s_cmp_eq_u32 s{S_BLK}, 15")
    e.i(f"s_cselect_b32 s{S_T2}, 20, 32")
    e.i(f"v_cmp_gt_u32 vcc, s{S_T2}, v{s0}")
    e.i(f"v_mov_b32 v{V_OOFF}, 0x80000000")
    e.i(f"s_nop 0")
    e.i(f"v_cndmask_b32 v{V_OOFF}, v{V_OOFF}, v{s2_}, vcc")
    e.i(f"s_lshl_b32 s3, s{S_WAVE}, 1")
    e.i(f"v_add_u32 v{s1}, s3, v{s1}")
    if cfg.swz: e.i(f"v_and_b32 v{s2_}, 7, v{s0}")
    else: e.i(f"v_bfe_u32 v{s2_}, v{s0}, 1, 3")
    e.i(f"v_xor_b32 v{s1}, v{s1}, v{s2_}")
    e.i(f"v_lshlrev_b32 v{s1}, 4, v{s1}")
    e.i(f"v_lshl_add_u32 v{s1}, v{s0}, 7, v{s1}")
    e.i(f"v_add_u32 v{V_OW}, {OBUF}, v{s1}")
    e.i(f"s_lshl_b32 s3, s{S_WAVE}, 10")
    e.i(f"s_add_u32 s3, s3, {OBUF}")
    e.i(f"v_lshlrev_b32 v{s1}, 4, v0")
    e.i(f"v_add_u32 v{V_OR}, s3, v{s1}")
    e.i(f"s_lshl_b32 s3, s{S_WAVE}, 3")
    e.i(f"v_lshrrev_b32 v{s0}, 3, v0")
    e.i(f"v_add_u32 v{s0}, s3, v{s0}")
    if cfg.swz: e.i(f"v_and_b32 v{s1}, 7, v{s0}")
    else: e.i(f"v_bfe_u32 v{s1}, v{s0}, 1, 3")
    e.i(f"v_and_b32 v{s2_}, 7, v0")
    e.i(f"v_xor_b32 v{s1}, v{s1}, v{s2_}")
    e.i(f"v_lshlrev_b32 v{s1}, 4, v{s1}")
    e.i(f"v_lshl_add_u32 v{s1}, v{s0}, 14, v{s1}")
    e.i(f"v_add_u32 v{s1}, s{S_T1}, v{s1}")
    e.i(f"v_cmp_gt_u32 vcc, s{S_T2}, v{s0}")
    e.i(f"v_mov_b32 v{V_OG}, 0x80000000")
    e.i(f"s_nop 0")
    e.i(f"v_cndmask_b32 v{V_OG}, v{V_OG}, v{s1}, vcc")
    e.i(f"v_and_b32 v{s0}, 15, v0")
    e.i(f"v_lshlrev_b32 v{s2_}, 14, v{s0}")
    e.i(f"v_bfe_u32 v{s1}, v0, 4, 1")
    e.i(f"v_lshl_add_u32 v{s2_}, v{s1}, 4, v{s2_}")
    e.i(f"v_lshrrev_b32 v{s1}, 5, v0")
    e.i(f"v_lshl_add_u32 v{s2_}, v{s1}, 3, v{s2_}")
    e.i(f"v_add_u32 v{V_O2[0]}, s{S_TSOFF}, v{s2_}")
    e.i(f"v_add_u32 v{s2_}, {16 << 14}, v{V_O2[0]}")
    e.i(f"v_add_u32 v{s0}, 16, v{s0}")
    e.i(f"v_cmp_gt_u32 vcc, s{S_T2}, v{s0}")
    e.i(f"v_mov_b32 v{V_O2[1]}, 0x80000000")
    e.i(f"v_mov_b32 v{V_OOB}, 0x80000000")
    e.i(f"v_cndmask_b32 v{V_O2[1]}, v{V_O2[1]}, v{s2_}, vcc")
    e.i(f"s_mov_b32 s{S_C1}, 0x{f2u(-2.0*math.log2(math.e)):08x}")
    e.i(f"s_mov_b32 s{S_C2}, 0x{f2u(-math.log2(math.e)):08x}")
    e.i(f"s_mov_b32 s{S_CL}, 0x{f2u(32.0):08x}")
    e.i(f"s_mov_b32 s{S_OSOFF}, -1024")

def srds_const():
    for (S, nbytes) in ((S_X, 16384000), (S_W, 786432), (S_O, 16384000)):
        e.i(f"s_mov_b32 s{S+2}, {nbytes}")
        e.i(f"s_mov_b32 s{S+3}, 0x20000")
def srds():
    for S in (S_X, S_W, S_O):
        e.i(f"s_and_b32 s{S+1}, s{S+1}, 0xffff")

def main():
    gen_head()
    srds_const()
    e.i("s_waitcnt lgkmcnt(0)")
    srds()
    e.stamp("start-issue")
    prologue()
    if not cfg.mbload:
        e.wait_lg_all()
        e.i(f"s_add_u32 s{S_M0H}, s{S_M0X}, 32768")
        e.stamp("enter steady")
        texts = {}
        head = e.lines
        for m in range(2, 14):
            e.lines = []
            step(m)
            texts[m] = e.lines
        e.lines = head
        if cfg.loop:
            for m in range(4, 14):
                assert texts[m] == texts[6 + (m & 1)], f"step {m} differs"
            for m in (2, 3):
                ref = texts[6 + (m & 1)]
                a = [l for l in texts[m] if "s_waitcnt" not in l]; b = [l for l in ref if "s_waitcnt" not in l]
                assert a == b, f"step {m} differs in more than waits"
                if texts[m] != ref:
                    import difflib
                    print(f"; step {m} wait differences:", [d for d in difflib.unified_diff(texts[m], ref, lineterm="", n=1)], file=sys.stderr)
            if cfg.align: e.raw(f".p2align {cfg.align}")
            e.raw("L_loop:")
            e.lines += texts[6] + texts[7]
            e.i(f"s_cmp_lt_u32 s{S_XSOFF}, {16*1024}")
            e.i("s_cbranch_scc1 L_loop")
        else:
            for m in range(2, 14): e.lines += texts[m]
        e.stamp("steady done")
        tail()
        if cfg.light:
            e.stamp("issued")
            e.i("s_waitcnt vmcnt(0) lgkmcnt(0)")
            e.stamp("drained")
            e.i("s_waitcnt lgkmcnt(0)")
            e.i(f"s_lshl_b32 s3, s2, 2")
            e.i(f"s_add_u32 s3, s3, s{S_WAVE}")
            e.i(f"s_lshl_b32 s3, s3, 8")
            e.i(f"s_add_u32 s42, s42, s3")
            e.i(f"s_addc_u32 s43, s43, 0")
            e.i(f"v_mov_b32 v0, 0")
            def st(a, off):
                e.i(f"v_mov_b32 v2, s{a}"); e.i(f"v_mov_b32 v3, s{a+1}")
                e.i(f"global_store_dwordx2 v0, v[2:3], s[42:43] offset:{off}"); e.i("s_nop 1")
            st(100, 0)
            for k in range(e.nstamp): st(44 + 2*k, 8*(k+1))
            print("light stamps:", LIGHT)
        elif cfg.stamps:
            e.i("s_waitcnt vmcnt(0) lgkmcnt(0)")
            e.stamp("end")
            e.i("s_memrealtime s[98:99]")
            e.i("s_waitcnt lgkmcnt(0)")
            if cfg.dbg:
                e.i("v_mov_b32 v0, 0")
                e.i("s_mov_b64 exec, 1")
                for k in range(e.nstamp):
                    e.i(f"s_sub_u32 s3, s{44+4*k}, s100")
                    e.i("v_mov_b32 v2, s3")
                    e.i(f"global_atomic_add v0, v2, s[42:43] offset:{4*k}")
                    if k < 16 - e.nstamp - 1: e.i(f"global_atomic_umax v0, v2, s[42:43] offset:{4*(e.nstamp + k)}")
                    e.i("s_nop 1")
                e.i("s_sub_u32 s3, s98, s96")
                e.i("v_mov_b32 v2, s3")
                e.i(f"global_atomic_add v0, v2, s[42:43] offset:60")
            else:
                e.i(f"s_lshl_b32 s3, s2, 2")
                e.i(f"s_add_u32 s3, s3, s{S_WAVE}")
                e.i(f"s_lshl_b32 s3, s3, 8")
                e.i(f"s_add_u32 s42, s42, s3")
                e.i(f"s_addc_u32 s43, s43, 0")
                e.i(f"v_mov_b32 v0, 0")
                def st(a, off):
                    e.i(f"v_mov_b32 v2, s{a}"); e.i(f"v_mov_b32 v3, s{a+1}")
                    e.i(f"global_store_dwordx2 v0, v[2:3], s[42:43] offset:{off}"); e.i("s_nop 1")
                st(100, 0)
                for k in range(e.nstamp):
                    st(44+4*k, 8*(k+1)); st(46+4*k, 8*(k+1)+112)
                st(96, 232); st(98, 240)
                e.i("s_getreg_b32 s3, hwreg(HW_REG_XCC_ID)")
                e.i("v_mov_b32 v2, s3")
                e.i("s_getreg_b32 s3, hwreg(HW_REG_HW_ID)")
                e.i("v_mov_b32 v3, s3")
                e.i(f"global_store_dwordx2 v0, v[2:3], s[42:43] offset:248")
    e.raw("L_end:")
    e.i("s_endpgm")
    e.raw('.section .rodata,"a"')
    e.raw(".p2align 6")
    e.raw(f".amdhsa_kernel {KNAME}")
    e.raw(f"  .amdhsa_next_free_vgpr 512")
    e.raw("  .amdhsa_next_free_sgpr 102")
    e.raw(f"  .amdhsa_accum_offset 256")
    e.raw("  .amdhsa_group_segment_fixed_size 0")
    e.raw("  .amdhsa_kernarg_size 40")
    e.raw("  .amdhsa_user_sgpr_count 2")
    e.raw("  .amdhsa_user_sgpr_kernarg_segment_ptr 1")
    e.raw("  .amdhsa_system_sgpr_workgroup_id_x 1")
    e.raw("  .amdhsa_float_denorm_mode_32 3")
    e.raw(".end_amdhsa_kernel")
    hdr = open("standalone__autoregressive_conv_wavernn__speech.s.ref").read().split("; Override")[0]
    open(sys.argv[1], "w").write(hdr + "\n".join(e.lines) + "\n")

main()
```

```python
import sys, math, struct
from collections import deque

KNAME = "standalone__autoregressive_conv_wavernn__speech_kernel"

class Cfg:
    stamps = 0
    store_flags = "sc1"
    tail_flags = ""
    xflags = ""
    wflags = ""
    order = "C"
    bar_gap = 24
    dma0 = 2
    dma_gap = 2
    rd_last = 88
    epi_start = 2
    cap = 2
    lat = 800
    ahead = 1
    pace = 64
    pace2 = 72
    ldslat = 140
    margin = 0
    lead = 14
    corder = 1
    pcap = 3
    tsplit = 1
    noepi = 0
    nobar = 0
    nodma = 0
    dump = -99
    loop = 1
    align = 0
    mbload = 0
    mbwin = 6
    swz = 1
    light = 0
    pfw = 0
    pfw0 = 0
    pfx = 0
    pfxflags = ""
    pfxn = 5
    dbg = 0

cfg = Cfg()
for a in sys.argv[2:]:
    k, v = a.split("=", 1)
    old = getattr(cfg, k)
    if isinstance(old, bool): v = v in ("1", "true", "True")
    elif isinstance(old, int): v = int(v)
    setattr(cfg, k, v)

def f2u(x): return struct.unpack("<I", struct.pack("<f", x))[0]

S_X, S_W, S_O = 12, 16, 20
S_WAVE, S_CG, S_BLK, S_B, S_PAR = 24, 25, 26, 27, 28
S_T0, S_T1, S_T2 = 29, 30, 31
S_C1, S_C2, S_CL = 32, 33, 34
S_XSOFF, S_OSOFF = 35, 36
S_WSOFF = 37
S_M0X = 38
S_M0H = 39
S_TSOFF = 40
S_XMIN = 41
V_XOFF = 1
V_WOFF = 5
V_XH = 9
V_XA = 13
V_WA = 17
V_OOFF = 21
V_OW = 22
V_OR = 23
V_OG = 24
V_S = 25
V_ORD = 28
V_O2 = [32, 33]
V_OOB = 34
V_PFW, V_PFX, V_PFD = 44, 45, 46
V_T2 = 36
V_Q, V_R = 48, 64
V_E = [80, 96]
V_T = 112
V_OUT = 124
V_XB = [128, 192]
A_XB = 192
NV = 256
OBUF = 65536

def vr(b, n): return f"v[{b}:{b+n-1}]"
def ar(b, n): return f"a[{b}:{b+n-1}]"
def sr(b, n): return f"s[{b}:{b+n-1}]"

class E:
    def __init__(self):
        self.lines = []; self.vm = []; self.lg = []; self.ninstr = 0; self.nstamp = 0
        self.safe = set(); self.lg_all = set()
    def raw(self, s): self.lines.append(s)
    def i(self, s):
        self.lines.append("    " + s); self.ninstr += 1
    def vmem(self, s, tag):
        self.i(s); self.vm.append(tag)
        assert len(self.vm) <= 63, "vmcnt overflow"
    def lds(self, s, tag):
        if len(self.lg) >= 15:
            self.wait(lg=[self.lg[0]])
        self.i(s); self.lg.append(tag); self.lg_all.add(tag)
    def _need(self, lst, tags):
        idx = -1
        for k, t in enumerate(lst):
            if t in tags: idx = k
        return idx
    def wait(self, vm=None, lg=None):
        parts = []
        if vm:
            idx = self._need(self.vm, vm)
            if idx >= 0:
                parts.append(f"vmcnt({len(self.vm)-1-idx})"); self.vm = self.vm[idx+1:]
        if lg:
            idx = self._need(self.lg, lg)
            if idx >= 0:
                parts.append(f"lgkmcnt({len(self.lg)-1-idx})")
                self.lg = self.lg[idx+1:]
        if parts: self.i("s_waitcnt " + " ".join(parts)); return True
        return False
    def wait_lg_all(self):
        if self.lg:
            self.lg = []; self.i("s_waitcnt lgkmcnt(0)")
    def barrier(self):
        self.safe |= (self.lg_all - set(self.lg))
        self.i("s_barrier")
    def stamp(self, name, level=1):
        if cfg.light:
            k = self.nstamp; self.nstamp += 1
            assert 44 + 2*k + 1 < 96
            self.i(f"s_memtime s[{44+2*k}:{45+2*k}]")
            LIGHT.append(name)
            return
        if cfg.stamps < level: return
        k = self.nstamp; self.nstamp += 1
        assert 44 + 4*k + 3 < 96
        self.wait_lg_all()
        self.i(f"s_memtime s[{44+4*k}:{45+4*k}]")
        self.i(f"s_memrealtime s[{46+4*k}:{47+4*k}]")
        self.i("s_waitcnt lgkmcnt(0)")

LIGHT = []
e = E()

def xslot(m): return {-1: 0, -2: 1, 0: 2, 1: 3}.get(m, (m + 2) & 3)
def wslot(q): return q % 6
def frag(m, j, tb):
    if m == 1: return ar(A_XB + 8*j + 4*tb, 4)
    b = {-1: V_XB[0], -2: V_XB[0], 0: V_XB[1]}.get(m, V_XB[m & 1])
    return vr(b + 8*j + 4*tb, 4)

def issue_x(m):
    soff = 1024 if m == -1 else max(m, 0)*1024
    return [("salu", f"s_add_u32 m0, s{S_M0X}, {xslot(m)*16384}"),
            ("salu", f"s_mov_b32 s{S_XSOFF}, {soff}")] + \
           [("vmem", f"buffer_load_dwordx4 v{(V_XH if m < 0 else V_XOFF)+k}, {sr(S_X,4)}, s{S_XSOFF} offen offset:{1024*k} {cfg.xflags} lds", f"X{m}") for k in range(4)]

def issue_x_loop(m):
    if m & 1:
        setup = [("salu", f"s_mov_b32 m0, s{S_M0H}"), ("salu", f"s_add_u32 s{S_XSOFF}, s{S_XSOFF}, 1024"),
                 ("salu", f"s_min_u32 s{S_XMIN}, s{S_XSOFF}, {15*1024}")]
        so = S_XMIN; after = []
    else:
        setup = [("salu", f"s_add_u32 m0, s{S_M0H}, 16384"), ("salu", f"s_add_u32 s{S_XSOFF}, s{S_XSOFF}, 1024")]
        so = S_XSOFF; after = [("salu", f"s_xor_b32 s{S_M0H}, s{S_M0H}, 32768")]
    loads = [("vmem", f"buffer_load_dwordx4 v{V_XOFF+k}, {sr(S_X,4)}, s{so} offen offset:{1024*k} {cfg.xflags} lds", f"X{m+3}") for k in range(4)]
    return setup, loads, after

def issue_w(q):
    return [("salu", f"s_add_u32 m0, s{S_M0X}, {65536 + wslot(q)*16384}"),
            ("salu", f"s_mov_b32 s{S_WSOFF}, {q*65536}")] + \
           [("vmem", f"buffer_load_dwordx4 v{V_WOFF+k}, {sr(S_W,4)}, s{S_WSOFF} offen offset:{1024*k} {cfg.wflags} lds", f"W{q}") for k in range(4)]

def emit(item):
    kind = item[0]
    if kind == "vmem": e.vmem(item[1], item[2])
    elif kind == "lds": e.lds(item[1], item[2])
    elif kind == "waitvm": e.wait(vm=item[1])
    elif kind == "waitlg": e.wait(lg=item[1])
    elif kind == "bar": e.barrier()
    else: e.i(item[1])

def emit_all(items):
    for it in items: emit(it)

def xread(m, j, tb, rel=False):
    off = (xslot(m) & 1 if rel else xslot(m))*16384 + tb*8192 + 256*(j >> 2)
    return ("lds", f"ds_read_b128 {frag(m, j, tb)}, v{V_XA + (j & 3)} offset:{off}", f"x{m}_{j}_{tb}")
def xtags(m): return [f"x{m}_{j}_{tb}" for j in range(8) for tb in range(2)]

def areg(tap, j, blk): return ((tap*8 + j)*2 + blk)*4

def wreads(q):
    tap, qq = q >> 2, q & 3
    slot = wslot(q)
    out = []
    for jp in range(2):
        for blk in range(2):
            for s in range(2):
                base = V_WA + blk + (2 if slot >= 4 else 0)
                off = (slot & 3)*16384 + jp*8192 + s*256
                a = areg(tap, 2*qq + jp, blk) + 2*s
                out.append(("lds", f"ds_read_b64_tr_b16 {ar(a,2)}, v{base} offset:{off}", f"w{q}_{jp}_{blk}_{s}"))
    return out

def accreg(base, blk, tb): return base + (blk*2 + tb)*4

def mf(D, tap, j, blk, B, C):
    Cs = "0" if C is None else vr(C, 4)
    return f"v_mfma_f32_16x16x32_bf16 {vr(D,4)}, {ar(areg(tap, j, blk),4)}, {B}, {Cs}"

def glu_pair(f0, g0, t, dst):
    z0, z1, y0, y1, p0, p1 = t, t+1, t+2, t+3, t+4, t+5
    return [
        (1, "valu", f"v_mul_f32 v{z0}, s{S_C1}, v{f0}"),
        (1, "valu", f"v_mul_f32 v{z1}, s{S_C1}, v{f0+1}"),
        (1, "valu", f"v_mul_f32 v{y0}, s{S_C2}, v{g0}"),
        (1, "valu", f"v_mul_f32 v{y1}, s{S_C2}, v{g0+1}"),
        (1, "valu", f"v_min_f32 v{z0}, s{S_CL}, v{z0}"),
        (1, "valu", f"v_min_f32 v{z1}, s{S_CL}, v{z1}"),
        (2, "valu", f"v_exp_f32 v{y0}, v{y0}"),
        (2, "valu", f"v_exp_f32 v{y1}, v{y1}"),
        (2, "valu", f"v_exp_f32 v{z0}, v{z0}"),
        (2, "valu", f"v_exp_f32 v{z1}, v{z1}"),
        (1, "valu", f"v_add_f32 v{p0}, 1.0, v{z0}"),
        (1, "valu", f"v_add_f32 v{p1}, 1.0, v{z1}"),
        (1, "valu", f"v_fmac_f32 v{p0}, v{p0}, v{y0}"),
        (1, "valu", f"v_fmac_f32 v{p1}, v{p1}, v{y1}"),
        (2, "valu", f"v_rcp_f32 v{p0}, v{p0}"),
        (2, "valu", f"v_rcp_f32 v{p1}, v{p1}"),
        (1, "valu", f"v_fma_f32 v{z0}, -v{z0}, v{p0}, v{p0}"),
        (1, "valu", f"v_fma_f32 v{z1}, -v{z1}, v{p1}, v{p1}"),
        (1, "valu", f"v_cvt_pk_bf16_f32 v{dst}, v{z0}, v{z1}"),
    ]

def glu_half(Eb, tb, O):
    a = glu_pair(accreg(Eb, 0, tb), accreg(Eb, 1, tb), V_T, O)
    b = glu_pair(accreg(Eb, 0, tb) + 2, accreg(Eb, 1, tb) + 2, V_T + 6, O + 1)
    out = []
    for lo, hi in ((0, 6), (6, 10), (10, 14), (14, 16), (16, 19)):
        out += a[lo:hi] + b[lo:hi]
    return out

def epilogue_ops(m, mode, src=None):
    ops = []
    Eb = V_E[m & 1] if src is None else src
    O = V_OUT
    n = 0
    for tb in range(2):
        for pr in range(2):
            t = V_T + (6 if n & 1 else 0); n += 1
            ops += glu_pair(accreg(Eb, 0, tb) + 2*pr, accreg(Eb, 1, tb) + 2*pr, t, O + 2*tb + pr)
    ops.append((1, "salu", f"s_mov_b32 s{S_TSOFF}, {m*1024}" if mode == "direct" else "s_nop 0"))
    ops.append((1, "valu", f"v_permlane32_swap_b32 v{O}, v{O+2}"))
    ops.append((1, "valu", f"v_permlane32_swap_b32 v{O+1}, v{O+3}"))
    if mode == "direct":
        ops.append((1, "salu", "s_nop 0"))
        ops.append((2, "vmem", f"buffer_store_dwordx4 {vr(O,4)}, v{V_OOFF}, {sr(S_O,4)}, s{S_TSOFF} offen {cfg.tail_flags}", f"S{m}"))
    else:
        ops.append((1, "lds", f"ds_write_b128 v{V_OW}, {vr(O,4)} offset:{(m & 1)*4096}", f"ow{m}"))
    return ops

def epilogue_half(m, tb):
    O = V_OUT + 2*tb
    ops = glu_half(V_E[m & 1], tb, O)
    ops.append((1, "salu", f"s_mov_b32 s{S_TSOFF}, {m*1024}"))
    ops.append((2, "vmem", f"buffer_store_dwordx2 {vr(O,2)}, v{V_O2[tb]}, {sr(S_O,4)}, s{S_TSOFF} offen {cfg.tail_flags}", f"S{m}_{tb}"))
    return ops

def readback_ops(m):
    st = [("salu", f"s_add_u32 s{S_OSOFF}, s{S_OSOFF}, 1024"),
          ("waitlg", [f"or{m}"]),
          ("vmem", f"buffer_store_dwordx4 {vr(V_ORD,4)}, v{V_OG}, {sr(S_O,4)}, s{S_OSOFF} offen {cfg.store_flags}", f"S{m}")]
    return [("lds", f"ds_read_b128 {vr(V_ORD,4)}, v{V_OR} offset:{(m & 1)*4096}", f"or{m}")], st

COST = {"salu": 1, "vmem": 2, "lds": 1, "waitvm": 1, "waitlg": 1, "bar": 1, "valu": 1}

def fill(gaps, pre, streams, g0, spread=True, cap=None):
    ng = len(gaps)
    if cfg.noepi: return []
    ops = [(st, o) for st, lst in streams for o in lst]
    fixed = [sum(COST[f[0]] for f in gaps[g]) + (sum(COST[f[0]] for f in pre[g+1]) if g+1 < ng else 0) for g in range(ng)]
    total = sum(o[0] for _, o in ops)
    L = cfg.cap if cap is None else cap
    if spread:
        while sum(max(0, L - fixed[g]) for g in range(g0, ng)) < total + 4: L += 1
    room0 = [max(0, L - fixed[g]) for g in range(ng)]
    avail = sum(room0[g0:])
    rate = min(1.0, (total + 6) / avail) if spread else 1.0
    k = 0; credit = 0.0
    for g in range(g0, ng):
        credit += room0[g]*rate
        room = room0[g]
        while k < len(ops) and ops[k][0] <= g and ops[k][1][0] <= room and (not spread or ops[k][1][0] <= credit + 0.999):
            credit -= ops[k][1][0]; room -= ops[k][1][0]
            gaps[g].append(ops[k][1][1:]); k += 1
    return [o for _, o in ops[k:]]

def chain_regs(ch, m):
    tap = {"P": 2, "Q": 1, "R": 0}[ch]
    D = {"P": V_E[m & 1], "Q": V_Q, "R": V_R}[ch]
    C0 = {"P": V_Q, "Q": V_R, "R": None}[ch]
    return tap, D, C0

def run_gaps(seq, gaps, pre):
    for g, (m, ch, j, blk, tb) in enumerate(seq):
        tap, Db, C0 = chain_regs(ch, m)
        D = accreg(Db, blk, tb)
        C = D if j else (None if C0 is None else accreg(C0, blk, tb))
        emit_all(pre[g])
        e.i(mf(D, tap, j, blk, frag(m, j, tb), C))
        emit_all(gaps[g])

def group(m, ch, blk, tb): return [(m, ch, j, blk, tb) for j in range(8)]
def chain(m, ch, tbs=(0, 1)): return [x for tb in tbs for blk in range(2) for x in group(m, ch, blk, tb)]

def step_seq(m, chains):
    if cfg.order == "C":
        return [x for ch in chains for x in chain(m, ch)]
    return [(m, ch, j, blk, tb) for j in range(8) for ch in chains for blk in range(2) for tb in range(2)]

def dump(m, gaps, pre):
    if cfg.dump == m:
        ng = len(gaps)
        cst = lambda f: 2 if ("exp" in f[1] or "rcp" in f[1]) else COST[f[0]]
        print([sum(cst(f) for f in gaps[g]) + (sum(COST[f[0]] for f in pre[g+1]) if g+1 < ng else 0) for g in range(ng)])

def place_reads(gaps, m, g0, g1, rel):
    rds = [xread(m, j, tb, rel) for tb in range(2) for j in range(8)]
    for k, r in enumerate(rds):
        gaps[g0 + (k*(g1 - g0))//15].append(r)

def step(m):
    seq = step_seq(m, ["P", "Q", "R"])
    ng = len(seq)
    gaps = [[] for _ in range(ng)]; pre = [[] for _ in range(ng)]
    pre[0].append(("waitlg", xtags(m)))
    g = cfg.dma0
    if not cfg.nodma:
        setup, loads, after = issue_x_loop(m)
        gaps[g-2] += setup[:2]; gaps[g-1] += setup[2:]
        for k in range(4):
            gaps[g].append(loads[k]); g += cfg.dma_gap
        gaps[g-1] += after
    if m & 1:
        for jj in range(4): gaps[g + jj].append(("valu", f"v_xor_b32 v{V_XA+jj}, 0x8000, v{V_XA+jj}"))
        assert g + 4 <= cfg.bar_gap
    bg = cfg.bar_gap
    gaps[bg].append(("waitvm", [f"X{m+1}"]))
    gaps[bg].append(("waitlg", [f"ow{m-2}"]))
    if not cfg.nobar: gaps[bg].append(("bar", "s_barrier"))
    rd, st = readback_ops(m-2)
    gaps[bg+1] += rd
    place_reads(gaps, m+1, bg+2, cfg.rd_last, True)
    gaps[bg+12] += st[:2]; gaps[bg+13] += st[2:]
    rest = fill(gaps, pre, [(0, epilogue_ops(m-1, "lds"))], cfg.epi_start)
    gaps[-1] += [o[1:] for o in rest]
    dump(m, gaps, pre)
    run_gaps(seq, gaps, pre)

def tail():
    if cfg.tsplit:
        seq = chain(14, "P") + chain(14, "Q", (0,)) + chain(15, "P", (0,)) + chain(14, "Q", (1,)) + chain(15, "P", (1,))
        need15 = 48; done15_0 = 64
    else:
        seq = chain(14, "P") + chain(14, "Q") + chain(15, "P")
        need15 = 64; done15_0 = None
    ng = len(seq)
    gaps = [[] for _ in range(ng)]; pre = [[] for _ in range(ng)]
    pre[0].append(("waitlg", xtags(14)))
    bg = 8
    gaps[bg].append(("waitvm", ["X15"]))
    gaps[bg].append(("waitlg", ["ow12"]))
    gaps[bg].append(("bar", "s_barrier"))
    rd, st = readback_ops(12)
    gaps[bg+1] += rd
    place_reads(gaps, 15, bg+2, need15 - 8, True)
    pre[need15].append(("waitlg", xtags(15)))
    gaps[bg+12] += st[:2]; gaps[bg+13] += st[2:]
    e13 = epilogue_ops(13, "lds")
    rd13, st13 = readback_ops(13)
    e13 += [(1, "waitlg", ["ow13"]), (1, "bar", "s_barrier")] + [(1,) + rd13[0]]
    e14 = epilogue_ops(14, "direct")
    e14 = e14[:12] + [(1,) + st13[0], (1,) + st13[1], (2,) + st13[2]] + e14[12:]
    streams = [(0, e13), (34, e14)]
    if cfg.tsplit: streams.append((done15_0 + 2, epilogue_half(15, 0)))
    rest = fill(gaps, pre, streams, cfg.epi_start, spread=True)
    dump(14, gaps, pre)
    run_gaps(seq, gaps, pre)
    e.stamp("mfma done")
    for o in rest: emit(o[1:])
    e.i("s_nop 7")
    if cfg.tsplit:
        for o in epilogue_half(15, 1): emit(o[1:])
    else:
        for o in epilogue_ops(15, "direct"): emit(o[1:])

def prologue():
    O0, O1 = V_E[0], V_E[1]
    items = [("X", -1), ("W", 0), ("X", 0), ("W", 1), ("X", 1), ("W", 2), ("W", 3), ("W", 4), ("W", 5), ("W", 6), ("W", 7),
             ("X", -2), ("W", 8), ("W", 9), ("W", 10), ("W", 11), ("X", 2), ("X", 3), ("X", 4)]
    def name(it): return f"{it[0]}{it[1]}"
    def wtags(q): return [f"w{q}_{jp}_{blk}_{s}" for jp in range(2) for blk in range(2) for s in range(2)]
    slot_free = {}
    for q in range(6, 12): slot_free[f"W{q}"] = wtags(q-6)
    slot_free["X2"] = xtags(-1); slot_free["X3"] = xtags(-2); slot_free["X4"] = xtags(0)
    started = set()
    issued = set()
    def product(q, m, acc):
        tap, qq = q >> 2, q & 3
        out = []
        for blk in range(2):
            for tb in range(2):
                for jp in range(2):
                    j = 2*qq + jp
                    D = accreg(acc, blk, tb)
                    first = (acc, blk, tb) not in started
                    started.add((acc, blk, tb))
                    tags = [f"w{q}_{jp}_{blk}_0", f"w{q}_{jp}_{blk}_1", f"x{m}_{j}_{tb}"]
                    out.append([mf(D, tap, j, blk, frag(m, j, tb), None if first else D), tags, None])
        out[-1][2] = (q, m)
        return out
    def xq(m, qq, after=None): return [(xread(m, j, tb), after) for j in (2*qq, 2*qq+1) for tb in range(2)]
    def xall(m, after=None): return [r for qq in range(4) for r in xq(m, qq, None if after is None else after(qq))]
    def xall_tb(m, after): return [(xread(m, j, tb), after(j >> 1)) for tb in range(2) for j in range(8)]
    def wr(q): return [(r, None) for r in wreads(q)]
    phases = []
    phases.append((["X-1", "W0"], wr(0)[:4] + xq(-1, 0)[:2] + wr(0)[4:] + xq(-1, 0)[2:] + xall(-1)[4:], [(0, -1, O1)]))
    phases.append((["X0"], xall(0), [(0, 0, V_Q)]))
    phases.append((["W1"], wr(1), [(1, -1, O1), (1, 0, V_Q)]))
    phases.append((["X1"], xall(1), [(0, 1, V_R), (1, 1, V_R)]))
    for q in (2, 3): phases.append(([f"W{q}"], wr(q), [(q, -1, O1), (q, 0, V_Q), (q, 1, V_R)]))
    for q in range(4, 8): phases.append(([f"W{q}"], wr(q), [(q, -1, O0), (q, 0, O1), (q, 1, V_Q)]))
    phases.append((["X-2"], xall(-2, lambda qq: (4+qq, -1)), [(q, -2, O0) for q in range(4)]))
    P0 = lambda c: (8+c, 0, O0)
    P1 = lambda c: (8+c, 1, O1)
    if cfg.corder == 0:   co = [[P0(0), P1(0)], [P0(1), P1(1)], [P0(2), P1(2)], [P0(3), P1(3)]]
    elif cfg.corder == 1: co = [[P0(0)], [P0(1), P1(0)], [P0(2), P1(1)], [P0(3), P1(2), P1(3)]]
    elif cfg.corder == 2: co = [[P0(0)], [P0(1)], [P0(2), P1(0)], [P0(3), P1(1), P1(2), P1(3)]]
    else:                 co = [[P0(0)], [P0(1)], [P0(2)], [P0(3), P1(0), P1(1), P1(2), P1(3)]]
    for c in range(4): phases.append(([f"W{8+c}"], wr(8+c), co[c]))
    phases.append((["X2"], xall_tb(2, lambda qq: (qq, -2)), []))
    dma = deque()
    for n, it in enumerate(items):
        if cfg.pfw == n + 1: dma.extend(("PF", 0, x) for x in pf_items("W"))
        if cfg.pfx == n + 1: dma.extend(("PF", 0, x) for x in pf_items("X"))
        lst = issue_x(it[1]) if it[0] == "X" else issue_w(it[1])
        if it in (("X", 3), ("X", 4)):
            lst = lst + [("vmem", f"buffer_load_dword v0, v{V_OOB}, {sr(S_X,4)}, 0 offen", "D")]
        for k, x in enumerate(lst): dma.append((name(it), k, x))
    if cfg.mbload:
        return mbload(items)
    t = 0; last_mf = -100; ta = 0
    arrival = {}; rdy = {}
    reads = deque(); mq = deque()
    pi = 0
    st = {"addr2": False, "nmf": 0, "epi": None, "epi_at": None, "since": {}}
    epi0 = deque(epilogue_ops(0, "lds"))
    def tick(n=4):
        nonlocal t
        t += n
    def dma_ok():
        if not dma: return False
        nm = dma[0][0]
        return all(tg in e.safe for tg in slot_free.get(nm, []))
    def pace(): return cfg.pace if st["nmf"] < 40 else cfg.pace2
    def do_dma():
        nonlocal t, ta
        nm, k, x = dma.popleft()
        if x[0] == "vmem":
            t = max(t, ta - pace()*cfg.ahead)
            ta = max(ta, t) + pace()
            arrival[nm] = ta + cfg.lat
        emit(x); tick()
    def dma_time():
        if dma[0][2][0] != "vmem": return 0
        return ta - pace()*cfg.ahead
    def phase_time():
        return max(arrival.get(n, 1 << 30) for n in phases[pi][0])
    def do_phase():
        nonlocal t, pi
        names, rds, prods = phases[pi]
        t = max(t, phase_time())
        idx = e._need(e.vm, names)
        parts = []
        if idx >= 0:
            parts.append(f"vmcnt({len(e.vm)-1-idx})"); e.vm = e.vm[idx+1:]
        if e.lg:
            parts.append("lgkmcnt(0)"); e.lg = []
        if parts: e.i("s_waitcnt " + " ".join(parts)); tick()
        e.barrier(); tick(12)
        e.raw(f"    ; phase {names} t={t} mfma={st['nmf']}")
        if names[0] in ("X-1", "X1", "W4", "X-2", "X2") or cfg.light: e.stamp(f"{names[0]}@{st['nmf']}", 2)
        for r in rds: reads.append(r)
        for p in prods:
            for x in product(*p): mq.append(x)
        pi += 1
    def read_ok():
        if not reads: return False
        a = reads[0][1]
        return a is None or (a in st["since"] and st["nmf"] >= st["since"][a] + 2) or (a in st["since"] and not mq)
    def do_read():
        r = reads.popleft()[0]
        emit(r); rdy[r[2]] = t + cfg.ldslat; tick()
    def mf_ready():
        if not mq: return None
        tags = mq[0][1]
        if any(tg not in e.lg_all for tg in tags): return None
        return max(rdy.get(tg, 0) for tg in tags)
    mf_ready_cache = [0]
    def do_mf():
        nonlocal t, last_mf
        s, tags, fin = mq.popleft()
        t = max(t, mf_ready_cache[0])
        if e.wait(lg=tags): tick()
        t = max(t, last_mf + 16)
        last_mf = t
        e.i(s); t += 4
        st["nmf"] += 1
        if fin is not None:
            st["since"][fin] = st["nmf"]
            if fin == (11, 0): st["epi_at"] = st["nmf"] + 4
        st["slots"] = 0
    def n_queued_ready():
        n = 0
        for x in mq:
            if any(tg not in e.lg_all for tg in x[1]): break
            n += 1
        return n
    st["slots"] = 0
    def epi_ok():
        return (not cfg.noepi) and epi0 and st["epi_at"] is not None and st["nmf"] >= st["epi_at"]
    while dma or reads or mq or pi < len(phases):
        r = mf_ready(); mf_ready_cache[0] = r or 0
        in_shadow = t < last_mf + 16
        if not st["addr2"] and (not dma or dma[0][0] == "W1"):
            gen_addr2(); t += 150; st["addr2"] = True; continue
        if read_ok() and (in_shadow or r is None or r > t):
            do_read(); st["slots"] += 1; continue
        if dma and dma_ok() and dma_time() <= t and (in_shadow or r is None or r > t or dma[0][2][0] == "vmem"):
            do_dma(); st["slots"] += 1; continue
        if pi < len(phases) and not reads and st["addr2"] and phase_time() < (1 << 30):
            nq = n_queued_ready()
            if (phase_time() + cfg.margin <= t and (nq <= cfg.lead*3)) or (nq <= cfg.lead and phase_time() <= t):
                do_phase(); continue
        if epi_ok() and mq and st["slots"] + epi0[0][0] <= cfg.pcap:
            o = epi0.popleft(); emit(o[1:]); st["slots"] += o[0]; tick(4*o[0]); continue
        if r is not None and r <= t + 8:
            do_mf(); continue
        cand = []
        if r is not None: cand.append((r, 0, do_mf))
        if dma and dma_ok(): cand.append((dma_time(), 1, do_dma))
        if pi < len(phases) and not reads and st["addr2"] and phase_time() < (1 << 30): cand.append((phase_time(), 2, do_phase))
        if read_ok(): cand.append((t, -1, do_read))
        assert cand, f"prologue deadlock t={t} pi={pi} dma={dma[0] if dma else None} reads={reads[0] if reads else None}"
        cand.sort(key=lambda c: (c[0], c[1]))
        cand[0][2]()
    if epi0 and not cfg.noepi:
        if st["nmf"] <= st["epi_at"]: e.i("s_nop 7")
        e.raw(f"    ; exposed part of the first epilogue: {len(epi0)} ops")
        while epi0:
            o = epi0.popleft(); emit(o[1:]); tick(4*o[0])
    return t

def mbload(items):
    k = 0
    pend = deque()
    def mt():
        nonlocal k
        e.i(f"s_memtime s[{44+2*k}:{45+2*k}]"); k += 1
    mt()
    if cfg.mbload == 2:
        for n, it in enumerate(items[:6]):
            lst = issue_x(it[1]) if it[0] == "X" else issue_w(it[1])
            for x in lst:
                emit(x)
                if x[0] == "vmem": mt()
        items = []
    for n, it in enumerate(items):
        if cfg.pfw == n + 1: emit_all(pf_items("W"))
        if cfg.pfx == n + 1: emit_all(pf_items("X"))
        lst = issue_x(it[1]) if it[0] == "X" else issue_w(it[1])
        emit_all(lst)
        pend.append(f"{it[0]}{it[1]}")
        if len(pend) > cfg.mbwin:
            e.wait(vm=[pend.popleft()]); mt()
    while pend:
        e.wait(vm=[pend.popleft()]); mt()
    e.i("s_waitcnt lgkmcnt(0)")
    e.i(f"s_lshl_b32 s3, s2, 2")
    e.i(f"s_add_u32 s3, s3, s{S_WAVE}")
    e.i(f"s_lshl_b32 s3, s3, 8")
    e.i(f"s_add_u32 s42, s42, s3")
    e.i(f"s_addc_u32 s43, s43, 0")
    e.i(f"v_mov_b32 v0, 0")
    def st(a, off):
        e.i(f"v_mov_b32 v2, s{a}"); e.i(f"v_mov_b32 v3, s{a+1}")
        e.i(f"global_store_dwordx2 v0, v[2:3], s[42:43] offset:{off}"); e.i("s_nop 1")
    st(100, 0)
    for n in range(k): st(44 + 2*n, 8*(n+1))

def gen_head():
    e.raw(f"; @launch grid=(256,1,1) block=(256,1,1) lds=163840")
    e.raw('.amdgcn_target "amdgcn-amd-amdhsa--gfx950"')
    e.raw(".text")
    e.raw(f".globl {KNAME}")
    e.raw(".p2align 8")
    e.raw(f".type {KNAME},@function")
    e.raw(f"{KNAME}:")
    e.i("s_cmp_ge_u32 s2, 256")
    e.i("s_cbranch_scc1 L_end")
    e.i(f"s_load_dwordx2 s[{S_X}:{S_X+1}], s[0:1], 0")
    e.i(f"s_load_dwordx2 s[{S_W}:{S_W+1}], s[0:1], 8")
    e.i(f"s_load_dwordx2 s[{S_O}:{S_O+1}], s[0:1], 16")
    if cfg.stamps or cfg.mbload or cfg.light:
        e.i(f"s_load_dwordx2 s[42:43], s[0:1], {24 if cfg.dbg else 32}")
        e.i("s_memtime s[100:101]")
        e.i("s_memrealtime s[96:97]")
    e.i("v_lshrrev_b32 v1, 6, v0")
    e.i("v_and_b32 v0, 63, v0")
    e.i(f"v_readfirstlane_b32 s{S_WAVE}, v1")
    e.i(f"s_and_b32 s{S_T0}, s2, 7")
    e.i(f"s_lshr_b32 s{S_T1}, s2, 3")
    e.i(f"s_and_b32 s{S_CG}, s{S_T1}, 3")
    e.i(f"s_lshr_b32 s{S_T1}, s{S_T1}, 2")
    e.i(f"s_lshl_b32 s{S_T0}, s{S_T0}, 3")
    e.i(f"s_add_u32 s{S_T0}, s{S_T0}, s{S_T1}")
    e.i(f"s_and_b32 s{S_BLK}, s{S_T0}, 15")
    e.i(f"s_lshr_b32 s{S_T1}, s{S_T0}, 4")
    e.i(f"s_and_b32 s{S_PAR}, s{S_T1}, 1")
    e.i(f"s_lshr_b32 s{S_B}, s{S_T1}, 1")
    e.i(f"s_mul_i32 s{S_T0}, s{S_B}, 16000")
    e.i(f"s_lshl_b32 s{S_T1}, s{S_BLK}, 10")
    e.i(f"s_add_u32 s{S_T0}, s{S_T0}, s{S_T1}")
    e.i(f"s_add_u32 s{S_T0}, s{S_T0}, s{S_PAR}")
    e.i(f"s_lshl_b32 s{S_T0}, s{S_T0}, 9")
    e.i(f"s_lshl_b32 s{S_M0X}, s{S_WAVE}, 12")
    s0, s1, s2_, s3 = V_S, V_S+1, V_S+2, V_S+3
    e.i(f"v_lshrrev_b32 v{s0}, 5, v0")
    e.i(f"v_and_b32 v{s1}, 31, v0")
    e.i(f"s_lshl_b32 s{S_T1}, s{S_WAVE}, 3")
    e.i(f"v_add_u32 v{s0}, s{S_T1}, v{s0}")
    e.i(f"s_cmp_eq_u32 s{S_BLK}, 15")
    e.i(f"s_cselect_b32 s{S_T2}, 20, 32")
    for k in range(4):
        e.i(f"v_add_u32 v{s2_}, {2*k}, v{s0}")
        e.i(f"v_and_b32 v{s3}, 15, v{s2_}")
        e.i(f"v_xor_b32 v{s3}, v{s3}, v{s1}")
        e.i(f"v_lshlrev_b32 v{s3}, 4, v{s3}")
        e.i(f"v_lshl_add_u32 v{s3}, v{s2_}, 14, v{s3}")
        e.i(f"v_add_u32 v{s3}, s{S_T0}, v{s3}")
        if k: e.i(f"v_subrev_u32 v{s3}, {1024*k}, v{s3}")
        e.i(f"v_cmp_gt_u32 vcc, s{S_T2}, v{s2_}")
        e.i(f"v_mov_b32 v{V_XOFF+k}, 0x80000000")
        e.i(f"s_nop 0")
        e.i(f"v_cndmask_b32 v{V_XOFF+k}, v{V_XOFF+k}, v{s3}, vcc")
    for k in range(4):
        e.i(f"v_subrev_u32 v{V_XH+k}, 2048, v{V_XOFF+k}")
    e.i(f"s_or_b32 s{S_T1}, s{S_BLK}, s{S_WAVE}")
    e.i(f"s_cmp_eq_u32 s{S_T1}, 0")
    e.i(f"s_cselect_b32 s{S_T1}, 32, 0")
    e.i(f"v_cmp_gt_u32 vcc, s{S_T1}, v0")
    e.i(f"v_mov_b32 v{s0}, 0x80000000")
    e.i(f"s_nop 0")
    e.i(f"v_cndmask_b32 v{V_XH}, v{V_XH}, v{s0}, vcc")
    e.i(f"v_lshrrev_b32 v{s0}, 4, v0")
    e.i(f"v_lshlrev_b32 v{s0}, 12, v{s0}")
    e.i(f"s_lshl_b32 s{S_T1}, s{S_WAVE}, 14")
    e.i(f"s_lshl_b32 s{S_T2}, s{S_CG}, 7")
    e.i(f"s_add_u32 s{S_T1}, s{S_T1}, s{S_T2}")
    e.i(f"v_add_u32 v{s0}, s{S_T1}, v{s0}")
    e.i(f"v_and_b32 v{s1}, 1, v0")
    e.i(f"v_lshl_add_u32 v{s0}, v{s1}, 4, v{s0}")
    e.i(f"v_bfe_u32 v{s1}, v0, 1, 3")
    e.i(f"v_lshrrev_b32 v{s2_}, 5, v0")
    e.i(f"v_lshlrev_b32 v{s2_}, 2, v{s2_}")
    e.i(f"v_xor_b32 v{s1}, v{s1}, v{s2_}")
    for k in range(4):
        e.i(f"v_xor_b32 v{s2_}, {k}, v{s1}")
        e.i(f"v_and_b32 v{s3}, 3, v{s2_}")
        e.i(f"v_lshl_add_u32 v{V_WOFF+k}, v{s3}, 5, v{s0}")
        e.i(f"v_lshrrev_b32 v{s3}, 2, v{s2_}")
        e.i(f"v_lshl_add_u32 v{V_WOFF+k}, v{s3}, 9, v{V_WOFF+k}")

def gen_pf():
    s0, s1, s2_, s3 = V_S, V_S+1, V_S+2, V_S+3
    if cfg.pfw:
        n = (6144 - cfg.pfw0 + 127)//128
        e.i(f"s_lshr_b32 s3, s2, 3")
        e.i(f"s_lshl_b32 s3, s3, 2")
        e.i(f"s_add_u32 s3, s3, s{S_WAVE}")
        e.i(f"s_mul_i32 s3, s3, {n}")
        e.i(f"s_add_u32 s3, s3, {cfg.pfw0}")
        e.i(f"v_add_u32 v{s0}, s3, v0")
        e.i(f"v_lshlrev_b32 v{s0}, 7, v{s0}")
        e.i(f"v_cmp_gt_u32 vcc, {n}, v0")
        e.i(f"v_mov_b32 v{V_PFW}, 0x80000000")
        e.i(f"s_nop 0")
        e.i(f"v_cndmask_b32 v{V_PFW}, v{V_PFW}, v{s0}, vcc")
    if cfg.pfx:
        e.i(f"v_lshrrev_b32 v{s0}, 5, v0")
        e.i(f"s_lshl_b32 s3, s{S_WAVE}, 1")
        e.i(f"v_add_u32 v{s0}, s3, v{s0}")
        e.i(f"v_lshlrev_b32 v{s1}, 10, v{s0}")
        e.i(f"v_cmp_eq_u32 vcc, 0, v{s0}")
        e.i(f"v_mov_b32 v{s2_}, 0xfffff800")
        e.i(f"s_nop 0")
        e.i(f"v_cndmask_b32 v{s1}, v{s1}, v{s2_}, vcc")
        e.i(f"v_bfe_u32 v{s2_}, v0, 2, 3")
        e.i(f"s_lshl_b32 s3, s{S_CG}, 3")
        e.i(f"v_add_u32 v{s2_}, s3, v{s2_}")
        e.i(f"v_lshl_add_u32 v{s1}, v{s2_}, 14, v{s1}")
        e.i(f"v_and_b32 v{s2_}, 3, v0")
        e.i(f"v_lshl_add_u32 v{s1}, v{s2_}, 7, v{s1}")
        e.i(f"v_add_u32 v{s1}, s{S_T0}, v{s1}")
        e.i(f"v_cmp_gt_u32 vcc, {cfg.pfxn}, v{s0}")
        e.i(f"v_mov_b32 v{V_PFX}, 0x80000000")
        e.i(f"s_nop 0")
        e.i(f"v_cndmask_b32 v{V_PFX}, v{V_PFX}, v{s1}, vcc")

def pf_items(kind):
    if kind == "W": return [("vmem", f"buffer_load_dword v{V_PFD}, v{V_PFW}, {sr(S_W,4)}, 0 offen", "PFW")]
    return [("vmem", f"buffer_load_dword v{V_PFD+1}, v{V_PFX}, {sr(S_X,4)}, 0 offen {cfg.pfxflags}", "PFX")]

def gen_addr2():
    s0, s1, s2_, s3 = V_S, V_S+1, V_S+2, V_S+3
    e.i(f"v_and_b32 v{s0}, 15, v0")
    e.i(f"v_lshrrev_b32 v{s1}, 4, v0")
    e.i(f"v_xor_b32 v{s2_}, v{s0}, v{s1}")
    e.i(f"v_lshlrev_b32 v{s2_}, 4, v{s2_}")
    e.i(f"v_lshl_add_u32 v{V_XA}, v{s0}, 9, v{s2_}")
    for jj in range(1, 4):
        e.i(f"v_xor_b32 v{V_XA+jj}, {64*jj}, v{V_XA}")
    e.i(f"v_bfe_u32 v{s0}, v0, 2, 2")
    e.i(f"v_bfe_u32 v{s1}, v0, 4, 1")
    e.i(f"v_lshlrev_b32 v{s2_}, 2, v{s1}")
    e.i(f"v_xor_b32 v{s2_}, s{S_WAVE}, v{s2_}")
    e.i(f"v_xor_b32 v{s2_}, v{s2_}, v{s0}")
    e.i(f"v_lshlrev_b32 v{s2_}, 5, v{s2_}")
    e.i(f"v_lshl_add_u32 v{s2_}, v{s0}, 10, v{s2_}")
    e.i(f"v_lshl_add_u32 v{s2_}, v{s1}, 9, v{s2_}")
    e.i(f"v_lshrrev_b32 v{s0}, 5, v0")
    e.i(f"v_lshl_add_u32 v{s2_}, v{s0}, 12, v{s2_}")
    e.i(f"v_and_b32 v{s0}, 1, v0")
    e.i(f"v_lshl_add_u32 v{s2_}, v{s0}, 4, v{s2_}")
    e.i(f"v_and_b32 v{s0}, 2, v0")
    e.i(f"v_lshl_add_u32 v{s2_}, v{s0}, 2, v{s2_}")
    e.i(f"v_add_u32 v{V_WA}, 0x10000, v{s2_}")
    e.i(f"v_xor_b32 v{V_WA+1}, 128, v{V_WA}")
    e.i(f"v_add_u32 v{V_WA+2}, 0x10000, v{V_WA}")
    e.i(f"v_add_u32 v{V_WA+3}, 0x10000, v{V_WA+1}")
    e.i(f"v_lshrrev_b32 v{s0}, 5, v0")
    e.i(f"v_and_b32 v{s1}, 15, v0")
    e.i(f"v_lshl_add_u32 v{s0}, v{s0}, 4, v{s1}")
    e.i(f"v_bfe_u32 v{s1}, v0, 4, 1")
    e.i(f"s_lshl_b32 s{S_T1}, s{S_CG}, 7")
    e.i(f"s_add_u32 s{S_T1}, s{S_T1}, s{S_T0}")
    e.i(f"s_lshl_b32 s3, s{S_WAVE}, 5")
    e.i(f"s_add_u32 s{S_TSOFF}, s3, s{S_T1}")
    e.i(f"v_lshlrev_b32 v{s2_}, 14, v{s0}")
    e.i(f"v_lshl_add_u32 v{s2_}, v{s1}, 4, v{s2_}")
    e.i(f"v_add_u32 v{s2_}, s{S_TSOFF}, v{s2_}")
    e.i(f"s_cmp_eq_u32 s{S_BLK}, 15")
    e.i(f"s_cselect_b32 s{S_T2}, 20, 32")
    e.i(f"v_cmp_gt_u32 vcc, s{S_T2}, v{s0}")
    e.i(f"v_mov_b32 v{V_OOFF}, 0x80000000")
    e.i(f"s_nop 0")
    e.i(f"v_cndmask_b32 v{V_OOFF}, v{V_OOFF}, v{s2_}, vcc")
    e.i(f"s_lshl_b32 s3, s{S_WAVE}, 1")
    e.i(f"v_add_u32 v{s1}, s3, v{s1}")
    if cfg.swz: e.i(f"v_and_b32 v{s2_}, 7, v{s0}")
    else: e.i(f"v_bfe_u32 v{s2_}, v{s0}, 1, 3")
    e.i(f"v_xor_b32 v{s1}, v{s1}, v{s2_}")
    e.i(f"v_lshlrev_b32 v{s1}, 4, v{s1}")
    e.i(f"v_lshl_add_u32 v{s1}, v{s0}, 7, v{s1}")
    e.i(f"v_add_u32 v{V_OW}, {OBUF}, v{s1}")
    e.i(f"s_lshl_b32 s3, s{S_WAVE}, 10")
    e.i(f"s_add_u32 s3, s3, {OBUF}")
    e.i(f"v_lshlrev_b32 v{s1}, 4, v0")
    e.i(f"v_add_u32 v{V_OR}, s3, v{s1}")
    e.i(f"s_lshl_b32 s3, s{S_WAVE}, 3")
    e.i(f"v_lshrrev_b32 v{s0}, 3, v0")
    e.i(f"v_add_u32 v{s0}, s3, v{s0}")
    if cfg.swz: e.i(f"v_and_b32 v{s1}, 7, v{s0}")
    else: e.i(f"v_bfe_u32 v{s1}, v{s0}, 1, 3")
    e.i(f"v_and_b32 v{s2_}, 7, v0")
    e.i(f"v_xor_b32 v{s1}, v{s1}, v{s2_}")
    e.i(f"v_lshlrev_b32 v{s1}, 4, v{s1}")
    e.i(f"v_lshl_add_u32 v{s1}, v{s0}, 14, v{s1}")
    e.i(f"v_add_u32 v{s1}, s{S_T1}, v{s1}")
    e.i(f"v_cmp_gt_u32 vcc, s{S_T2}, v{s0}")
    e.i(f"v_mov_b32 v{V_OG}, 0x80000000")
    e.i(f"s_nop 0")
    e.i(f"v_cndmask_b32 v{V_OG}, v{V_OG}, v{s1}, vcc")
    e.i(f"v_and_b32 v{s0}, 15, v0")
    e.i(f"v_lshlrev_b32 v{s2_}, 14, v{s0}")
    e.i(f"v_bfe_u32 v{s1}, v0, 4, 1")
    e.i(f"v_lshl_add_u32 v{s2_}, v{s1}, 4, v{s2_}")
    e.i(f"v_lshrrev_b32 v{s1}, 5, v0")
    e.i(f"v_lshl_add_u32 v{s2_}, v{s1}, 3, v{s2_}")
    e.i(f"v_add_u32 v{V_O2[0]}, s{S_TSOFF}, v{s2_}")
    e.i(f"v_add_u32 v{s2_}, {16 << 14}, v{V_O2[0]}")
    e.i(f"v_add_u32 v{s0}, 16, v{s0}")
    e.i(f"v_cmp_gt_u32 vcc, s{S_T2}, v{s0}")
    e.i(f"v_mov_b32 v{V_O2[1]}, 0x80000000")
    e.i(f"v_mov_b32 v{V_OOB}, 0x80000000")
    e.i(f"v_cndmask_b32 v{V_O2[1]}, v{V_O2[1]}, v{s2_}, vcc")
    e.i(f"s_mov_b32 s{S_C1}, 0x{f2u(-2.0*math.log2(math.e)):08x}")
    e.i(f"s_mov_b32 s{S_C2}, 0x{f2u(-math.log2(math.e)):08x}")
    e.i(f"s_mov_b32 s{S_CL}, 0x{f2u(32.0):08x}")
    e.i(f"s_mov_b32 s{S_OSOFF}, -1024")

def srds_const():
    for (S, nbytes) in ((S_X, 16384000), (S_W, 786432), (S_O, 16384000)):
        e.i(f"s_mov_b32 s{S+2}, {nbytes}")
        e.i(f"s_mov_b32 s{S+3}, 0x20000")
def srds():
    for S in (S_X, S_W, S_O):
        e.i(f"s_and_b32 s{S+1}, s{S+1}, 0xffff")

def main():
    gen_head()
    gen_pf()
    srds_const()
    e.i("s_waitcnt lgkmcnt(0)")
    srds()
    e.stamp("start-issue")
    prologue()
    if not cfg.mbload:
        e.wait_lg_all()
        e.i(f"s_add_u32 s{S_M0H}, s{S_M0X}, 32768")
        e.stamp("enter steady")
        texts = {}
        head = e.lines
        for m in range(2, 14):
            e.lines = []
            step(m)
            texts[m] = e.lines
        e.lines = head
        if cfg.loop:
            for m in range(4, 14):
                assert texts[m] == texts[6 + (m & 1)], f"step {m} differs"
            for m in (2, 3):
                ref = texts[6 + (m & 1)]
                a = [l for l in texts[m] if "s_waitcnt" not in l]; b = [l for l in ref if "s_waitcnt" not in l]
                assert a == b, f"step {m} differs in more than waits"
                if texts[m] != ref:
                    import difflib
                    print(f"; step {m} wait differences:", [d for d in difflib.unified_diff(texts[m], ref, lineterm="", n=1)], file=sys.stderr)
            if cfg.align: e.raw(f".p2align {cfg.align}")
            e.raw("L_loop:")
            e.lines += texts[6] + texts[7]
            e.i(f"s_cmp_lt_u32 s{S_XSOFF}, {16*1024}")
            e.i("s_cbranch_scc1 L_loop")
        else:
            for m in range(2, 14): e.lines += texts[m]
        e.stamp("steady done")
        tail()
        if cfg.light:
            e.stamp("issued")
            e.i("s_waitcnt vmcnt(0) lgkmcnt(0)")
            e.stamp("drained")
            e.i("s_waitcnt lgkmcnt(0)")
            e.i(f"s_lshl_b32 s3, s2, 2")
            e.i(f"s_add_u32 s3, s3, s{S_WAVE}")
            e.i(f"s_lshl_b32 s3, s3, 8")
            e.i(f"s_add_u32 s42, s42, s3")
            e.i(f"s_addc_u32 s43, s43, 0")
            e.i(f"v_mov_b32 v0, 0")
            def st(a, off):
                e.i(f"v_mov_b32 v2, s{a}"); e.i(f"v_mov_b32 v3, s{a+1}")
                e.i(f"global_store_dwordx2 v0, v[2:3], s[42:43] offset:{off}"); e.i("s_nop 1")
            st(100, 0)
            for k in range(e.nstamp): st(44 + 2*k, 8*(k+1))
            print("light stamps:", LIGHT)
        elif cfg.stamps:
            e.i("s_waitcnt vmcnt(0) lgkmcnt(0)")
            e.stamp("end")
            e.i("s_memrealtime s[98:99]")
            e.i("s_waitcnt lgkmcnt(0)")
            if cfg.dbg:
                e.i("v_mov_b32 v0, 0")
                e.i("s_mov_b64 exec, 1")
                for k in range(e.nstamp):
                    e.i(f"s_sub_u32 s3, s{44+4*k}, s100")
                    e.i("v_mov_b32 v2, s3")
                    e.i(f"global_atomic_add v0, v2, s[42:43] offset:{4*k}")
                    if k < 16 - e.nstamp - 1: e.i(f"global_atomic_umax v0, v2, s[42:43] offset:{4*(e.nstamp + k)}")
                    e.i("s_nop 1")
                e.i("s_sub_u32 s3, s98, s96")
                e.i("v_mov_b32 v2, s3")
                e.i(f"global_atomic_add v0, v2, s[42:43] offset:60")
            else:
                e.i(f"s_lshl_b32 s3, s2, 2")
                e.i(f"s_add_u32 s3, s3, s{S_WAVE}")
                e.i(f"s_lshl_b32 s3, s3, 8")
                e.i(f"s_add_u32 s42, s42, s3")
                e.i(f"s_addc_u32 s43, s43, 0")
                e.i(f"v_mov_b32 v0, 0")
                def st(a, off):
                    e.i(f"v_mov_b32 v2, s{a}"); e.i(f"v_mov_b32 v3, s{a+1}")
                    e.i(f"global_store_dwordx2 v0, v[2:3], s[42:43] offset:{off}"); e.i("s_nop 1")
                st(100, 0)
                for k in range(e.nstamp):
                    st(44+4*k, 8*(k+1)); st(46+4*k, 8*(k+1)+112)
                st(96, 232); st(98, 240)
                e.i("s_getreg_b32 s3, hwreg(HW_REG_XCC_ID)")
                e.i("v_mov_b32 v2, s3")
                e.i("s_getreg_b32 s3, hwreg(HW_REG_HW_ID)")
                e.i("v_mov_b32 v3, s3")
                e.i(f"global_store_dwordx2 v0, v[2:3], s[42:43] offset:248")
    e.raw("L_end:")
    e.i("s_endpgm")
    e.raw('.section .rodata,"a"')
    e.raw(".p2align 6")
    e.raw(f".amdhsa_kernel {KNAME}")
    e.raw(f"  .amdhsa_next_free_vgpr 512")
    e.raw("  .amdhsa_next_free_sgpr 102")
    e.raw(f"  .amdhsa_accum_offset 256")
    e.raw("  .amdhsa_group_segment_fixed_size 0")
    e.raw("  .amdhsa_kernarg_size 40")
    e.raw("  .amdhsa_user_sgpr_count 2")
    e.raw("  .amdhsa_user_sgpr_kernarg_segment_ptr 1")
    e.raw("  .amdhsa_system_sgpr_workgroup_id_x 1")
    e.raw("  .amdhsa_float_denorm_mode_32 3")
    e.raw(".end_amdhsa_kernel")
    hdr = open("standalone__autoregressive_conv_wavernn__speech.s.ref").read().split("; Override")[0]
    open(sys.argv[1], "w").write(hdr + "\n".join(e.lines) + "\n")

main()
```
